```python
import torch

def _softmax(x, axis=-1):
    return torch.softmax(x, dim=axis)
def _gelu(x):
    return torch.nn.functional.gelu(x, approximate="tanh")
def _silu(x):
    return torch.nn.functional.silu(x)
def _sigmoid(x):
    return torch.sigmoid(x)
def _layernorm(x, axis=-1, eps=1e-5):
    m = x.mean(dim=axis, keepdim=True)
    v = x.var(dim=axis, keepdim=True, unbiased=False)
    return (x - m) / torch.sqrt(v + eps)
def _scatter_add(tgt, idx, src, axis=0):
    return tgt.clone().index_add_(axis, idx, src)
def _segment_sum(src, seg, n):
    out = torch.zeros((n,) + src.shape[1:], dtype=src.dtype)
    return out.index_add_(0, seg, src)
def _pad(x, pw):
    flat = tuple(v for pair in reversed(pw) for v in pair)
    return torch.nn.functional.pad(x, flat)

kernel_name = 'interleave_layers__grouped_kv_mqa__dense_activation_silu__prompt'

def setup_inputs():

    _w = (lambda a: (lambda t: t.to(torch.bfloat16) if t.is_floating_point() else t)(torch.as_tensor(a)))
    def _A_setup():
        B, S, D, H = 1, 2048, 512, 32
        Dh = D // H
        return {
            "x": _w((lambda *s: torch.randn(*s, dtype=torch.bfloat16) * 0.05)(B, S, D)),
            "wq": _w((lambda *s: torch.randn(*s, dtype=torch.bfloat16) * 0.05)(D, H * Dh)),
            "wk": _w((lambda *s: torch.randn(*s, dtype=torch.bfloat16) * 0.05)(D, Dh)),
            "wv": _w((lambda *s: torch.randn(*s, dtype=torch.bfloat16) * 0.05)(D, Dh)),
            "wo": _w((lambda *s: torch.randn(*s, dtype=torch.bfloat16) * 0.05)(H * Dh, D)),
        }
    _A_in = _A_setup()

    def _B_setup():
        B, S, D, F = 1, 2048, 512, 1376
        return {
            "x": _w((lambda *s: torch.randn(*s, dtype=torch.bfloat16) * 0.05)(B, S, D)),
            "w1": _w((lambda *s: torch.randn(*s, dtype=torch.bfloat16) * 1.6)(D, F) * (D ** -0.5)),
            "w2": _w((lambda *s: torch.randn(*s, dtype=torch.bfloat16) * 0.2)(F, D) * (F ** -0.5)),
        }
    _B_in = _B_setup()

    return {
        "A_x": _A_in["x"],
        "A_wq": _A_in["wq"],
        "A_wk": _A_in["wk"],
        "A_wv": _A_in["wv"],
        "A_wo": _A_in["wo"],
        "B_x": _B_in["x"],
        "B_w1": _B_in["w1"],
        "B_w2": _B_in["w2"],
    }

def reference(A_x, A_wq, A_wk, A_wv, A_wo, B_x, B_w1, B_w2):
    def _A_ref(x, wq, wk, wv, wo):
        B, S, D = x.shape
        H = 32
        Dh = D // H
        q = (lambda x, *d: x.permute(*d))((x @ wq).reshape(B, S, H, Dh), 0, 2, 1, 3)
        k = x @ wk
        v = x @ wv
        scores = torch.einsum("bhqd,bkd->bhqk", q, k) * (Dh ** -0.5)
        p = _softmax(scores, axis=-1)
        o = torch.einsum("bhqk,bkd->bhqd", p, v)
        return (lambda x, *d: x.permute(*d))(o, 0, 2, 1, 3).reshape(B, S, H * Dh) @ wo

    def _B_ref(x, w1, w2):
        h = torch.einsum("bsd,df->bsf", x, w1)
        h = _silu(h)
        out = torch.einsum("bsf,fd->bsd", h, w2)
        return out

    x = A_x
    x = x + _A_ref(_layernorm(x, axis=-1), A_wq, A_wk, A_wv, A_wo)
    x = x + _B_ref(_layernorm(x, axis=-1), B_w1, B_w2)
    x = x + _A_ref(_layernorm(x, axis=-1), A_wq, A_wk, A_wv, A_wo)
    x = x + _B_ref(_layernorm(x, axis=-1), B_w1, B_w2)
    return x
```

```python
NAME = "interleave_layers__grouped_kv_mqa__dense_activation_silu__prompt"

WQF  = 0x000000
WOF  = 0x080000
W1F  = 0x100000
W2F  = 0x260000
WKVF = 0x3B8000
KV1  = 0x3C0000
VOFF = 0x10000
VBLK = 272
FLG  = 0x3F0000
QFB  = 0x400000
X1F  = QFB
CSB  = 0x3E4000
X2F  = 0x600000
OF   = X2F
HX   = 0x800000
KV2  = 0xD60000
ST1  = 0xD90000
ST2  = 0xDB0000
WS_USED = 0xE00000

QSCALE = 0.25 * 1.4426950408889634

import struct
def f32bits(x):
    return struct.unpack("<I", struct.pack("<f", x))[0]

class Asm:
    def __init__(self):
        self.lines = []
        self.uid = 0
    def __call__(self, s):
        for ln in s.split("\n"):
            ln = ln.strip()
            if not ln:
                continue
            if ln.endswith(":") or ln.startswith(".") :
                self.lines.append(ln)
            else:
                self.lines.append("    " + ln)
    def c(self, s):
        self.lines.append("    ; " + s)
    def label(self, base):
        self.uid += 1
        return f"L_{base}_{self.uid}"
    def text(self):
        return "\n".join(self.lines) + "\n"

def vr(b, n=1):
    return f"v{b}" if n == 1 else f"v[{b}:{b+n-1}]"
def ar(b, n=1):
    return f"a{b}" if n == 1 else f"a[{b}:{b+n-1}]"
def sr(b, n=1):
    return f"s{b}" if n == 1 else f"s[{b}:{b+n-1}]"

def kernel_begin(A, name):
    A(f".globl {name}")
    A(".p2align 8")
    A(f".type {name},@function")
    A(f"{name}:")

def descriptor(name, nvgpr, accum, nsgpr=96):
    return f""".amdhsa_kernel {name}
  .amdhsa_next_free_vgpr {nvgpr}
  .amdhsa_next_free_sgpr {nsgpr}
  .amdhsa_accum_offset {accum}
  .amdhsa_group_segment_fixed_size 0
  .amdhsa_kernarg_size 88
  .amdhsa_user_sgpr_count 2
  .amdhsa_user_sgpr_kernarg_segment_ptr 1
  .amdhsa_system_sgpr_workgroup_id_x 1
.end_amdhsa_kernel
"""

def make_srd(A, d, p, nbytes, add=None):
    if add is None:
        A(f"s_mov_b32 s{d}, s{p}")
        A(f"s_and_b32 s{d+1}, s{p+1}, 0xffff")
    else:
        A(f"s_add_u32 s{d}, s{p}, {add}")
        A(f"s_addc_u32 s{d+1}, s{p+1}, 0")
        A(f"s_and_b32 s{d+1}, s{d+1}, 0xffff")
    A(f"s_mov_b32 s{d+2}, {nbytes}")
    A(f"s_mov_b32 s{d+3}, 0x20000")

def wave_sum(A, v, sdst):
    for mod in ("quad_perm:[1,0,3,2] row_mask:0xf", "quad_perm:[2,3,0,1] row_mask:0xf",
                "row_half_mirror row_mask:0xf", "row_mirror row_mask:0xf",
                "row_bcast:15 row_mask:0xa", "row_bcast:31 row_mask:0xc"):
        A("s_nop 1")
        A(f"v_add_f32_dpp v{v}, v{v}, v{v} {mod} bank_mask:0xf")
    A("s_nop 0")
    A(f"v_readlane_b32 s{sdst}, v{v}, 63")

def unpack8(A, dst, src):
    for i in range(4):
        A(f"v_lshlrev_b32 v{dst+2*i}, 16, v{src+i}")
        A(f"v_and_b32 v{dst+2*i+1}, 0xffff0000, v{src+i}")

def layernorm8(A, x, t, pk, s0):
    A(f"v_add_f32 v{t}, v{x}, v{x+1}")
    for i in range(2, 8):
        A(f"v_add_f32 v{t}, v{t}, v{x+i}")
    wave_sum(A, t, s0)
    A("s_nop 1")
    A(f"v_mov_b32 v{t}, s{s0}")
    A(f"v_mul_f32 v{t}, {f32bits(-1.0/512.0):#x}, v{t}")
    for i in range(8):
        A(f"v_add_f32 v{x+i}, v{x+i}, v{t}")
    A(f"v_mul_f32 v{t}, v{x}, v{x}")
    for i in range(1, 8):
        A(f"v_fmac_f32 v{t}, v{x+i}, v{x+i}")
    wave_sum(A, t, s0)
    A(f"s_mov_b32 s{s0+1}, {f32bits(1.0/512.0):#x}")
    A(f"v_mov_b32 v{t}, {f32bits(1e-5):#x}")
    A(f"v_mov_b32 v{pk}, s{s0}")
    A(f"v_fmac_f32 v{t}, s{s0+1}, v{pk}")
    A(f"v_rsq_f32 v{t}, v{t}")
    A("s_nop 0")
    for i in range(8):
        A(f"v_mul_f32 v{x+i}, v{x+i}, v{t}")
    for i in range(4):
        A(f"v_cvt_pk_bf16_f32 v{pk+i}, v{x+2*i}, v{x+2*i+1}")

import os
STAMPS = bool(os.environ.get("STAMPS"))
STAMP_OFF = 0x1200000
if STAMPS:
    WS_USED = 0x1200000 + 0x400000
NSTAMP = 12
def stamp_init(A):
    if not STAMPS: return
    A("s_memrealtime s[64:65]")
    A("s_memtime s[88:89]")
    A("s_load_dword s96, s[0:1], 72")
    for k in range(1, NSTAMP):
        A(f"s_mov_b32 s{64+2*k}, 0")
    A("s_mov_b32 s92, 0")
    A("s_mov_b32 s94, 0")
def cstamp(A, k):
    if not STAMPS or os.environ.get("CSPAN"): return
    A(f"s_memtime s[{92+2*k}:{93+2*k}]")
STAMP_NAMES = os.environ.get("STAMPS", "").split(",")
CSPAN = os.environ.get("CSPAN", "").split(",")
def stamp(A, k):
    if not STAMPS: return
    if k in CSPAN:
        A(f"s_memtime s[{92+2*CSPAN.index(k)}:{93+2*CSPAN.index(k)}]")
    if isinstance(k, str):
        if k not in STAMP_NAMES: return
        k = STAMP_NAMES.index(k) + 1
        assert k < NSTAMP - 1
    A(f"s_memrealtime s[{64+2*k}:{65+2*k}]")
def stamp_flush(A, k=None):
    if not STAMPS: return
    A("s_waitcnt vmcnt(0)")
    A(f"s_memrealtime s[{64+2*(NSTAMP-1)}:{65+2*(NSTAMP-1)}]")
    A("s_memtime s[90:91]")
    A("s_waitcnt lgkmcnt(0)")
    A("s_sub_u32 s88, s90, s88")
    A("s_sub_u32 s90, s94, s92")
    A("s_mov_b64 exec, 1")
    A("s_lshr_b32 s96, s96, 9")
    A("s_and_b32 s96, s96, 15")
    A("s_lshl_b32 s96, s96, 9")
    A("s_add_u32 s96, s96, s2")
    A("s_lshl_b32 s96, s96, 3")
    A("s_add_u32 s96, s96, s3")
    A("s_lshl_b32 s96, s96, 6")
    A(f"s_add_u32 s96, s96, {STAMP_OFF}")
    A("v_mov_b32 v0, 0")
    for k in range(NSTAMP+2):
        A(f"v_mov_b32 v1, s{64+2*k}")
        A(f"buffer_store_dword v1, v0, s[8:11], s96 offen offset:{4*k}")

def ln_multi(A, rows, s0):
    n = len(rows)
    def wsum():
        for mod in ("quad_perm:[1,0,3,2] row_mask:0xf", "quad_perm:[2,3,0,1] row_mask:0xf",
                    "row_half_mirror row_mask:0xf", "row_mirror row_mask:0xf",
                    "row_bcast:15 row_mask:0xa", "row_bcast:31 row_mask:0xc"):
            if n < 3:
                A(f"s_nop {2-n}")
            for x, t, pk in rows:
                A(f"v_add_f32_dpp v{t}, v{t}, v{t} {mod} bank_mask:0xf")
        if n < 2:
            A("s_nop 0")
        for i, (x, t, pk) in enumerate(rows):
            if i == n-1 and n == 2:
                pass
            A(f"v_readlane_b32 s{s0+i}, v{t}, 63")
    for x, t, pk in rows:
        A(f"v_add_f32 v{t}, v{x}, v{x+1}")
    for i in range(2, 8):
        for x, t, pk in rows:
            A(f"v_add_f32 v{t}, v{t}, v{x+i}")
    wsum()
    A(f"s_mov_b32 s{s0+n}, {f32bits(-1.0/512.0):#x}")
    A("s_nop 0")
    for i, (x, t, pk) in enumerate(rows):
        A(f"v_mov_b32 v{t}, s{s0+i}")
    for i in range(8):
        for x, t, pk in rows:
            A(f"v_fmac_f32 v{x+i}, s{s0+n}, v{t}")
    for x, t, pk in rows:
        A(f"v_mul_f32 v{t}, v{x}, v{x}")
    for i in range(1, 8):
        for x, t, pk in rows:
            A(f"v_fmac_f32 v{t}, v{x+i}, v{x+i}")
    wsum()
    A(f"s_mov_b32 s{s0+n}, {f32bits(1.0/512.0):#x}")
    for x, t, pk in rows:
        A(f"v_mov_b32 v{t}, {f32bits(1e-5):#x}")
    for i, (x, t, pk) in enumerate(rows):
        A(f"v_mov_b32 v{pk}, s{s0+i}")
    for x, t, pk in rows:
        A(f"v_fmac_f32 v{t}, s{s0+n}, v{pk}")
    for x, t, pk in rows:
        A(f"v_rsq_f32 v{t}, v{t}")
    A("s_nop 0")
    for i in range(8):
        for x, t, pk in rows:
            A(f"v_mul_f32 v{x+i}, v{x+i}, v{t}")
    for i in range(4):
        for x, t, pk in rows:
            A(f"v_cvt_pk_bf16_f32 v{pk+i}, v{x+2*i}, v{x+2*i+1}")

class Cnt:
    def __init__(self, A, name, mx):
        self.A, self.name, self.mx = A, name, mx
        self.tags = []; self.done = 0
    def issue(self, tag):
        self.tags.append(tag)
        assert len(self.tags) - self.done <= (self.mx if self.name == "vmcnt" else 10**9), f"{self.name} overflow"
    def need(self, tag):
        idx = max(i for i, t in enumerate(self.tags) if t == tag)
        if idx < self.done:
            return
        n = min(len(self.tags) - 1 - idx, self.mx)
        self.A(f"s_waitcnt {self.name}({n})")
        self.done = len(self.tags) - n
    def all(self, force=False):
        if force or self.done < len(self.tags):
            self.A(f"s_waitcnt {self.name}(0)")
            self.done = len(self.tags)
    def mark_all_done(self):
        self.done = len(self.tags)
```

```python
from common import *
import os
FORCE_SLOW = bool(os.environ.get('ATT_FORCE_SLOW'))
FORCE_XMODE = bool(os.environ.get('FORCE_XMODE'))

PB = 0
PB_T = 2304
PB_S = 8*PB_T
XL = 0
RB = 0
WL = 4*PB_S
MISC = WL + 65536
FLAG = 0
STL = 64
MX = 1024
LAYER_LDS = MISC + 2048

V_T, V_FL, V_NRD, V_IPV, V_Z, V_CHK, V_K, V_V, V_XID, V_ONE, V_L4, V_WL, V_FL2 = 0, 3, 4, 5, 6, 8, 9, 10, 11, 12, 13, 14, 15
V_RS = V_CHK
V_MISC = V_FL
QF = 16
S = [48, 64]
OA = [80, 96]
XT = 112
KF, VF = 0, 64

L_LO = f32bits(2.0**-30)
L_HI = f32bits(2.0**40)
POLL_MAX = 200000

def R(reg, n):
    return vr(reg[1], n) if reg[0] == 'v' else ar(reg[1], n)

W1R = [('v', 120+4*k) for k in range(34)] + [('a', 192+4*k) for k in range(14)]
_ret = []
for _s in range(16):
    _ret += [('a', KF+4*_s), ('a', VF+8*_s), ('a', VF+8*_s+4)]
W2R = _ret[:44]
BR = [('v', 16+4*k) for k in range(12)] + _ret[44:]
BO = [('v', 32+4*k) for k in range(8)] + _ret[42:] + [('a', 248), ('a', 252)]
ARING, ACC16 = 64, 96

def qk(A, dst, s, T, c="0"):
    A(f"v_mfma_f32_32x32x16_bf16 {vr(dst,16)}, {ar(KF+4*s,4)}, {vr(QF+4*T,4)}, {c}")
def smf_pv(A, oa, g, sreg):
    A(f"v_smfmac_f32_32x32x32_bf16 {vr(oa,16)}, {ar(VF+4*g,4)}, {vr(sreg,8)}, v{V_IPV}")
def zero16(A, d):
    A(f"v_mfma_f32_32x32x8_bf16 {vr(d,16)}, {vr(V_Z,2)}, {vr(V_Z,2)}, 0")
def pkadd(A, d, a, b):
    A(f"v_pk_add_f32 {vr(d,2)}, {vr(a,2)}, {vr(b,2)}")
def mfma16(A, d, a, b, first):
    A(f"v_mfma_f32_16x16x32_bf16 {vr(d,4)}, {a}, {b}, {'0' if first else vr(d,4)}")

def emit_flush(A, oa, k, toff):
    if k < 2:
        A(f"ds_write_b128 v{V_FL}, {vr(oa+4*k,4)} offset:{toff + k*1024}")
    else:
        A(f"ds_write_b32 v{V_FL2}, v{oa+8} offset:{toff + 2048}")

def kv_loads(A, vm, s, st):
    kb = (s >> 2)*4096
    if st.get("k") != kb:
        A(f"s_add_u32 s60, s46, {kb}"); st["k"] = kb
    A(f"buffer_load_dwordx4 {ar(KF+4*s,4)}, v2, s[8:11], s60 offen offset:{(s & 3)*1024}")
    if vm: vm.issue(("k", s))
    vb = (s // 3)*3*4*VBLK
    if st.get("v") != vb:
        A(f"s_add_u32 s61, s47, {vb}"); st["v"] = vb
    for h in range(2):
        A(f"buffer_load_dwordx4 {ar(VF+4*(2*s+h),4)}, v{V_V}, s[8:11], s61 offen offset:{(s % 3)*4*VBLK + h*2*VBLK}")
        if vm: vm.issue(("v", 2*s+h))

def q_loads(A, vm):
    A("s_lshl_b32 s48, s4, 13")
    A(f"s_add_u32 s48, s48, {QFB}")
    for T in range(8):
        if T == 4:
            A("s_add_u32 s48, s48, 4096")
        A(f"buffer_load_dwordx4 {vr(QF+4*T,4)}, v2, s[8:11], s48 offen offset:{(T & 3)*1024}")
        if vm: vm.issue(("q", T))

def w1_load(A, vm, f):
    ks, mt = f // 3, f % 3
    base = "s63" if mt == 2 else "s62"
    off = (16384 if mt == 1 else 0) + ks*1024
    A(f"s_add_u32 s51, {base}, {off & ~4095}")
    A(f"buffer_load_dwordx4 {R(W1R[f],4)}, v2, s[16:19], s51 offen offset:{off & 4095}")
    if vm: vm.issue(("w1", f))

def w2_load(A, vm, n):
    if n % 4 == 0:
        A(f"s_add_u32 s50, s55, {n*1024}")
    A(f"buffer_load_dwordx4 {R(W2R[n],4)}, v2, s[20:23], s50 offen offset:{(n % 4)*1024}")
    if vm: vm.issue(("w2", n))

def wl_dma(A, vm, k, sbase):
    if k % 4 == 0:
        A(f"s_add_u32 m0, s45, {k*1024}")
        A(f"s_add_u32 s49, s{sbase}, {k*1024}")
    A(f"buffer_load_dwordx4 v2, s[8:11], s49 offen offset:{(k % 4)*1024} lds")
    if vm: vm.issue(("wl", k))

def publish(A, k):
    lf, ld = A.label("pf"), A.label("pd")
    A(f"s_add_u32 s48, s59, {k*4096}")
    A("s_waitcnt vmcnt(0)")
    A("s_cmp_eq_u32 s56, 0")
    A(f"s_cbranch_scc1 {lf}")
    A("buffer_wbl2 sc1")
    A("s_waitcnt vmcnt(0)")
    A("s_mov_b64 exec, 1")
    A(f"buffer_store_dword v{V_ONE}, v{V_Z}, s[8:11], s48 offen sc1")
    A(f"s_branch {ld}")
    A(f"{lf}:")
    A("s_mov_b64 exec, 1")
    A(f"buffer_store_dword v{V_ONE}, v{V_Z}, s[8:11], s48 offen")
    A(f"{ld}:")
    A("s_mov_b64 exec, -1")

def wait_flags(A, vaddr, acquire=True):
    lp, ld = A.label("poll"), A.label("polled")
    A("s_mov_b32 s43, 0")
    A("s_mov_b64 exec, 0xff")
    A(f"{lp}:")
    A(f"buffer_load_dword v{V_XID}, v{vaddr}, s[8:11], s48 offen sc1")
    A("s_add_u32 s43, s43, 1")
    A("s_waitcnt vmcnt(0)")
    A(f"v_cmp_eq_u32 vcc, 0, v{V_XID}")
    A(f"s_cmp_ge_u32 s43, {POLL_MAX}")
    A(f"s_cbranch_scc1 {ld}")
    A("s_nop 1")
    A(f"s_cbranch_vccnz {lp}")
    A(f"{ld}:")
    if acquire:
        A("s_mov_b64 exec, -1")
        la = A.label("noacq")
        A("s_cmp_eq_u32 s56, 0")
        A(f"s_cbranch_scc1 {la}")
        A("buffer_inv sc1")
        A("s_waitcnt vmcnt(0)")
        A(f"{la}:")

def wait_same_wave(A, k):
    A("s_lshl_b32 s48, s3, 2")
    A("s_add_u32 s48, s48, s53")
    A(f"s_add_u32 s48, s48, {k*4096}")
    wait_flags(A, 2)
def wait_two_members(A, k):
    A("s_lshl_b32 s48, s3, 5")
    A("s_add_u32 s48, s48, s53")
    A(f"s_add_u32 s48, s48, {k*4096}")
    wait_flags(A, V_L4)

def n_stage(A, check):
    P, L = 16, 88
    for src in range(4):
        A(f"ds_read_b32 v{L+src}, v{V_T} offset:{src*PB_S}")
    for src in range(4):
        for k in range(4):
            A(f"ds_read_b128 {vr(P+16*src+4*k,4)}, v{V_NRD} offset:{src*PB_S + (k >> 1)*1024 + (k & 1)*512}")
    A("s_waitcnt lgkmcnt(8)")
    A(f"v_add_f32 v{L}, v{L}, v{L+1}")
    A(f"v_add_f32 v{L+2}, v{L+2}, v{L+3}")
    for i in range(0, 16, 2):
        pkadd(A, P+i, P+i, P+16+i)
    A(f"v_add_f32 v{L}, v{L}, v{L+2}")
    A(f"v_rcp_f32 v{L+2}, v{L}")
    A(f"v_subrev_u32 v{V_CHK}, s52, v{L}")
    A("s_waitcnt lgkmcnt(0)")
    for i in range(0, 16, 2):
        pkadd(A, P+32+i, P+32+i, P+48+i)
    for i in range(0, 16, 2):
        pkadd(A, P+i, P+i, P+32+i)
    for i in range(0, 16, 2):
        A(f"v_pk_mul_f32 {vr(P+i,2)}, {vr(P+i,2)}, {vr(L+2,2)} op_sel_hi:[1,0]")
    for i in range(8):
        A(f"v_cvt_pk_bf16_f32 v{80+i}, v{P+2*i}, v{P+2*i+1}")
    A(f"s_add_u32 s48, s44, {OF}")
    for e in range(2):
        A(f"buffer_store_dwordx4 {vr(80+4*e,4)}, v2, s[8:11], s48 offen offset:{e*1024}")

def l_addr(A):
    A(f"v_lshrrev_b32 v{V_T}, 4, v1")
    A(f"v_mul_u32_u24 v{V_T}, {2*PB_T}, v{V_T}")
    A(f"v_and_b32 v{S[0]}, 15, v1")
    A(f"v_lshl_add_u32 v{V_T}, v{S[0]}, 2, v{V_T}")
    A(f"v_add_u32 v{V_T}, s40, v{V_T}")

def gen_attention(A, vm, lg):
    st = {}
    stamp(A, "setup")
    q_loads(A, vm)
    for s in range(4):
        kv_loads(A, vm, s, st)
    lab = A.label("noxid")
    A("s_cmp_lg_u32 s3, 0")
    A(f"s_cbranch_scc1 {lab}")
    A("s_lshl_b32 s48, s6, 2")
    A("s_add_u32 s48, s48, s53")
    A(f"v_mov_b32 v{V_XID}, s57")
    A("s_mov_b64 exec, 1")
    A(f"buffer_store_dword v{V_XID}, v{V_Z}, s[8:11], s48 offen sc1")
    A("s_mov_b64 exec, -1")
    A(f"{lab}:")
    zero16(A, OA[0])
    zero16(A, OA[1])
    vm.need(("k", 0))
    qk(A, S[0], 0, 0)
    A("s_nop 7")
    A("s_nop 3")
    ex = {}
    def at(z, e, fn):
        ex.setdefault((z, e), []).append(fn)
    SB, SQ, SA = 1, 4, 9
    for z in range(12):
        at(z, SB, lambda s=z+4: kv_loads(A, vm, s, st))
    def xt_load():
        l1, l2 = A.label("xt1"), A.label("xt2")
        A(f"s_add_u32 s48, s44, {X2F}")
        A("s_cmp_eq_u32 s7, 0")
        A(f"s_cbranch_scc1 {l1}")
        for e in range(2):
            A(f"buffer_load_dwordx4 {vr(XT+4*e,4)}, v2, s[8:11], s48 offen offset:{e*1024}")
        A(f"s_branch {l2}")
        A(f"{l1}:")
        A(f"v_lshlrev_b32 v{V_T}, 7, v1")
        A("s_mov_b64 exec, 0xffff")
        A(f"buffer_load_dword v{V_CHK}, v{V_T}, s[8:11], s48 offen sc1")
        A("s_mov_b64 exec, -1")
        A("s_lshl_b32 s48, s6, 7")
        A("s_add_u32 s48, s48, s39")
        for e in range(2):
            A(f"buffer_load_dwordx4 {vr(XT+4*e,4)}, v{V_K}, s[12:15], s48 offen offset:{e*16}")
        A(f"{l2}:")
        vm.issue(("xt",)); vm.issue(("xt",))
    at(18, SA, xt_load)
    for k in range(16):
        at(20+k, SA, lambda k=k: wl_dma(A, vm, k, 41))
    for f in range(48):
        at(36+f, SA, lambda f=f: w1_load(A, vm, f))
    at(60, SQ, lambda: vm.need(("wl", 15)))
    at(100, SQ, lambda: vm.need(("w1", 47)))
    def xid_load():
        A("s_mov_b64 exec, 0xff")
        A(f"buffer_load_dword v{V_XID}, v{V_L4}, s[8:11], s53 offen sc1"); vm.issue(("xid",))
        A("s_mov_b64 exec, -1")
    at(102, SB, xid_load)
    def touch(k):
        if k == 0:
            A(f"v_lshlrev_b32 v{V_T}, 7, v1")
            A("s_mul_i32 s48, s3, 6144")
            A("s_mov_b32 exec_hi, 0xffff")
            A(f"buffer_load_dword v{V_CHK}, v{V_T}, s[24:27], s48 offen sc1")
        elif k < 3:
            A(f"s_add_u32 s48, s38, {ST1 if k == 1 else ST2}")
            A("s_mov_b64 exec, 0xff")
            A(f"buffer_load_dword v{V_CHK}, v{V_T}, s[8:11], s48 offen sc1")
        else:
            A(f"v_lshlrev_b32 v{V_T}, 12, v1")
            A("s_mov_b64 exec, 0x1e")
            A(f"buffer_load_dword v{V_CHK}, v{V_T}, s[8:11], s53 offen sc1")
        vm.issue(("touch",))
        A("s_mov_b64 exec, -1")
    for k in range(4):
        at(88+2*k, SB, lambda k=k: touch(k))
    at(110, SQ, lambda: vm.need(("touch",)))
    NW2 = 42
    for n in range(NW2):
        at(114 + n//3, [SB, SQ, SA][n % 3], lambda n=n: w2_load(A, vm, n))
    for i in range(1, 8):
        z0 = 16*i
        for k, (dz, pos) in enumerate([(1, SB), (2, SB), (3, SB)]):
            def f(T=i-1, k=k):
                emit_flush(A, OA[T & 1], k, T*PB_T); lg.issue(("fl", T))
            at(z0+dz, pos, f)
        if i < 7:
            at(z0+6, SB, lambda T=i-1: lg.need(("fl", T)))
            at(z0+6, 13, lambda T=i+1: zero16(A, OA[T & 1]))
    for z in range(128):
        i, s = z >> 4, z & 15
        cur, oth = S[z & 1], S[(z+1) & 1]
        A.c(f"step {i}.{s}")
        if z in (0, 16):
            stamp(A, {0: "loop0", 16: "loop16"}[z])
        if z == 32: cstamp(A, 0)
        if z == 96: cstamp(A, 1)
        for e in range(16):
            A(f"v_exp_f32 v{cur+e}, v{cur+e}")
            if e == SB and z > 0:
                pz = z-1
                vm.need(("v", 2*(pz & 15)+1))
                smf_pv(A, OA[(pz >> 4) & 1], 2*(pz & 15)+1, oth+8)
            if e == SQ and z < 127:
                vm.need(("k", (z+1) & 15))
                qk(A, oth, (z+1) & 15, (z+1) >> 4)
            if e == SA:
                vm.need(("v", 2*s))
                smf_pv(A, OA[i & 1], 2*s, cur)
            for fn in ex.get((z, e), []):
                fn()
    stamp(A, "loopend")
    A("s_nop 1")
    smf_pv(A, OA[1], 31, S[1]+8)
    l_addr(A)
    A("s_nop 6")
    for k in range(3):
        emit_flush(A, OA[1], k, 7*PB_T)
    A("s_waitcnt lgkmcnt(0)")
    lg.mark_all_done()
    A("s_barrier")
    stamp(A, "bar1")
    n_stage(A, True)
    stamp(A, "nst")
    A(f"v_mov_b32 v{V_MISC}, {MISC}")
    A(f"v_cmp_lt_u32 vcc, s54, v{V_CHK}")
    A("s_nop 4")
    lab = A.label("noflag")
    if not FORCE_SLOW:
        A(f"s_cbranch_vccz {lab}")
    A(f"ds_write_b32 v{V_MISC}, v{V_ONE} offset:{FLAG}")
    A(f"{lab}:")
    return NW2

def gen_slow(A, l_slow, l_back, NW2):
    A(f"{l_slow}:")
    A("s_waitcnt vmcnt(0)")
    st = {}
    for s in range(16):
        kv_loads(A, None, s, st)
    q_loads(A, None)
    VM = V_CHK
    A(f"v_lshlrev_b32 v{VM}, 2, v1")
    A("s_lshl_b32 s48, s3, 8")
    A(f"s_add_u32 s48, s48, {MISC + MX}")
    A(f"v_add_u32 v{VM}, s48, v{VM}")
    A(f"v_mov_b32 v{S[0]}, 0xff800000")
    A(f"ds_write_b32 v{VM}, v{S[0]}")
    A("s_waitcnt vmcnt(0) lgkmcnt(0)")
    A("s_barrier")
    A(f"v_and_b32 v{VM}, 31, v1")
    A(f"v_lshlrev_b32 v{VM}, 2, v{VM}")
    A(f"v_add_u32 v{VM}, {MISC + MX}, v{VM}")
    M = OA[1]
    def rot_q():
        for r in range(4):
            A(f"v_mov_b32 v{M+1+r}, v{QF+r}")
        for r in range(28):
            A(f"v_mov_b32 v{QF+r}, v{QF+4+r}")
        for r in range(4):
            A(f"v_mov_b32 v{QF+28+r}, v{M+1+r}")
    A("s_mov_b32 s42, 0")
    l1 = A.label("p1")
    A(f"{l1}:")
    A(f"v_mov_b32 v{M}, 0xff800000")
    A("s_nop 1")
    for s in range(16):
        qk(A, S[0], s, 0)
        A("s_nop 7"); A("s_nop 4")
        for e in range(0, 16, 2):
            A(f"v_max3_f32 v{M}, v{S[0]+e}, v{S[0]+e+1}, v{M}")
    A(f"ds_max_f32 v{VM}, v{M}")
    A(f"v_add_u32 v{VM}, 128, v{VM}")
    rot_q()
    A("s_waitcnt lgkmcnt(0)")
    A("s_add_u32 s42, s42, 1")
    A("s_cmp_lt_u32 s42, 8")
    A(f"s_cbranch_scc1 {l1}")
    A("s_barrier")
    A(f"v_subrev_u32 v{VM}, 1024, v{VM}")
    A(f"s_mul_i32 s48, s3, {PB_S}")
    A(f"v_add_u32 v{V_FL}, s48, v2")
    A("s_mov_b32 s42, 0")
    l2 = A.label("p2")
    A(f"{l2}:")
    A(f"ds_read_b32 v{M}, v{VM}")
    A("s_waitcnt lgkmcnt(0)")
    for e in range(16):
        A(f"v_sub_f32 v{S[1]+e}, 0, v{M}")
    for e in range(16):
        A(f"v_mov_b32 v{OA[0]+e}, 0")
    A("s_nop 1")
    for s in range(16):
        qk(A, S[0], s, 0, vr(S[1], 16))
        A("s_nop 7"); A("s_nop 4")
        for e in range(16):
            A(f"v_exp_f32 v{S[0]+e}, v{S[0]+e}")
        A("s_nop 1")
        smf_pv(A, OA[0], 2*s, S[0])
        smf_pv(A, OA[0], 2*s+1, S[0]+8)
    A("s_nop 7"); A("s_nop 4")
    for k in range(3):
        emit_flush(A, OA[0], k, 0)
    A(f"v_add_u32 v{VM}, 128, v{VM}")
    rot_q()
    A("s_waitcnt lgkmcnt(0)")
    A(f"v_add_u32 v{V_FL}, {PB_T}, v{V_FL}")
    A(f"v_add_u32 v{V_FL2}, {PB_T}, v{V_FL2}")
    A("s_add_u32 s42, s42, 1")
    A("s_cmp_lt_u32 s42, 8")
    A(f"s_cbranch_scc1 {l2}")
    l_addr(A)
    A("s_barrier")
    n_stage(A, False)
    A(f"v_mov_b32 v{V_MISC}, {MISC}")
    for n in range(NW2):
        w2_load(A, None, n)
    A("s_barrier")
    A(f"s_branch {l_back}")

def aread(A, lg, n, tag, ring=ARING):
    A(f"ds_read_b128 {vr(ring+4*(n % 8),4)}, v{V_WL} offset:{n*1024}"); lg.issue((tag, n))

def gemm64_core(A, vm, lg, breg, acc, extra, waitb, tag="a", pre=True, init=True, bload=None, ahead=8, ring=ARING):
    if pre:
        for n in range(8):
            aread(A, lg, n, tag, ring)
    if waitb:
        vm.need(("b", 0))
    lg.need((tag, 0))
    for ks in range(16):
        for c in range(4):
            n = ks*4 + c
            mfma16(A, acc+4*c, vr(ring+4*(n % 8), 4), breg(ks), init and ks == 0)
            if n + 8 < 64:
                aread(A, lg, n+8, tag, ring)
            if c == 1 and bload and ks + ahead < 16:
                bload(ks + ahead)
            if c == 3 and waitb and ks < 15:
                vm.need(("b", ks+1))
            if n < 63:
                lg.need((tag, n+1))

def kv_kind(A):
    A("s_and_b32 s42, s6, 1")
    A("s_add_u32 s42, s42, 1")
    A("s_lshr_b32 s48, s6, 1")
    A("s_cmp_eq_u32 s48, s3")
    A("s_cselect_b32 s60, s42, 0")

def kv_mfmas(A, dst, breg, WKV):
    lv, ld = A.label("kvv"), A.label("kvd")
    A("s_cmp_eq_u32 s60, 0")
    A(f"s_cbranch_scc1 {ld}")
    A("s_cmp_eq_u32 s60, 2")
    A(f"s_cbranch_scc1 {lv}")
    for ks in range(16):
        mfma16(A, dst, vr(WKV+4*ks, 4), breg(ks), ks == 0)
    A(f"s_branch {ld}")
    A(f"{lv}:")
    for ks in range(16):
        mfma16(A, dst, breg(ks), vr(WKV+4*ks, 4), ks == 0)
    A(f"{ld}:")

def stats_store(A, x, t, dst):
    for i in range(0, 8, 2):
        pkadd(A, t+i, x+i, x+8+i)
    A(f"v_pk_mul_f32 {vr(t+8,2)}, {vr(x,2)}, {vr(x,2)}")
    pkadd(A, t, t, t+4)
    pkadd(A, t+2, t+2, t+6)
    for i in range(2, 16, 2):
        A(f"v_pk_fma_f32 {vr(t+8,2)}, {vr(x+i,2)}, {vr(x+i,2)}, {vr(t+8,2)}")
    pkadd(A, t, t, t+2)
    A(f"v_add_f32 v{t+8}, v{t+8}, v{t+9}")
    A(f"v_add_f32 v{t}, v{t}, v{t+1}")
    A(f"v_and_b32 v{t+2}, 15, v1")
    A(f"v_lshlrev_b32 v{t+2}, 4, v{t+2}")
    A(f"v_permlane32_swap_b32 v{t}, v{t+8}")
    A(f"v_lshrrev_b32 v{t+3}, 5, v1")
    A(f"v_add_f32 v{t}, v{t}, v{t+8}")
    A(f"v_mov_b32 v{t+8}, v{t}")
    A(f"v_lshl_add_u32 v{t+2}, v{t+3}, 2, v{t+2}")
    A(f"s_add_u32 s48, s38, {dst}")
    A(f"v_permlane16_swap_b32 v{t}, v{t+8}")
    A("s_add_u32 s48, s48, s37")
    A(f"v_add_f32 v{t}, v{t}, v{t+8}")
    A("s_mov_b32 exec_lo, 0xffff")
    A("s_mov_b32 exec_hi, 0xffff")
    A(f"buffer_store_dword v{t}, v{t+2}, s[8:11], s48 offen")
    A("s_mov_b64 exec, -1")

def stats_load(A, vm, t, src, sc="sc1"):
    A(f"s_add_u32 s48, s38, {src}")
    A(f"buffer_load_dwordx4 {vr(t,4)}, v2, s[8:11], s48 offen {sc}"); vm.issue(("stat",))

def stats_ops(t):
    o = [f"v_add_f32 v{t}, v{t}, v{t+2}", f"v_add_f32 v{t+1}, v{t+1}, v{t+3}"]
    for op in ("v_permlane32_swap_b32", "v_permlane16_swap_b32"):
        o += [f"v_mov_b32 v{t+2}, v{t}", f"v_mov_b32 v{t+3}, v{t+1}", "s_nop 0",
              f"{op} v{t}, v{t+2}", f"{op} v{t+1}, v{t+3}",
              f"v_add_f32 v{t}, v{t}, v{t+2}", f"v_add_f32 v{t+1}, v{t+1}, v{t+3}"]
    return o + stats_fin(t)

def stats_fin(t):
    o = []
    o.append(f"v_mul_f32 v{t}, {f32bits(-1.0/512.0):#x}, v{t}")
    o.append(f"v_mul_f32 v{t+1}, {f32bits(1.0/512.0):#x}, v{t+1}")
    o.append(f"v_fma_f32 v{t+1}, -v{t}, v{t}, v{t+1}")
    o.append(f"v_max_f32 v{t+1}, 0, v{t+1}")
    o.append(f"v_add_f32 v{t+1}, {f32bits(1e-5):#x}, v{t+1}")
    o.append(f"v_rsq_f32 v{t+1}, v{t+1}")
    o.append("s_nop 0")
    return o

def q_epilogue(A, ACC16, CSQ, STT, XT):
    A(f"v_lshrrev_b32 v{V_T}, 4, v1")
    A(f"v_lshlrev_b32 v{V_T}, 11, v{V_T}")
    A(f"v_and_b32 v{V_K}, 15, v1")
    A(f"v_lshl_add_u32 v{V_T}, v{V_K}, 4, v{V_T}")
    A("s_lshl_b32 s48, s4, 13")
    A("s_lshr_b32 s42, s3, 1")
    A("s_lshl_b32 s42, s42, 10")
    A("s_add_u32 s48, s48, s42")
    A("s_and_b32 s42, s3, 1")
    A("s_lshl_b32 s42, s42, 8")
    A("s_add_u32 s48, s48, s42")
    A(f"s_add_u32 s48, s48, {QFB}")
    A(f"v_mov_b32 v{STT+2}, v{STT+1}")
    for i in range(0, 16, 2):
        A(f"v_pk_fma_f32 {vr(ACC16+i,2)}, {vr(CSQ+i,2)}, {vr(STT,2)}, {vr(ACC16+i,2)} op_sel_hi:[1,0,1]")
    for i in range(0, 16, 2):
        A(f"v_pk_mul_f32 {vr(ACC16+i,2)}, {vr(ACC16+i,2)}, {vr(STT+2,2)} op_sel_hi:[1,0]")
    for i in range(8):
        A(f"v_cvt_pk_bf16_f32 v{XT+i}, v{ACC16+2*i}, v{ACC16+2*i+1}")
    for hh in range(2):
        A(f"buffer_store_dwordx4 {vr(XT+4*hh,4)}, v{V_T}, s[8:11], s48 offen offset:{hh*512}")

def kv_epilogue(A, AKV, CSK, STT, ONES, lfin, stl):
    A(f"v_and_b32 v{V_K}, 15, v1")
    lvv = A.label("vout")
    A("s_cmp_eq_u32 s60, 0")
    A(f"s_cbranch_scc1 {lfin}")
    A("s_cmp_eq_u32 s60, 2")
    A(f"s_cbranch_scc1 {lvv}")
    A(f"v_mul_f32 v{STT+1}, {f32bits(QSCALE):#x}, v{STT+1}")
    for r in range(4):
        A(f"v_fmac_f32 v{AKV+r}, v{STT}, v{CSK+r}")
    for r in range(4):
        A(f"v_mul_f32 v{AKV+r}, v{STT+1}, v{AKV+r}")
    A(f"v_cvt_pk_bf16_f32 v{AKV+4}, v{AKV}, v{AKV+1}")
    A(f"v_cvt_pk_bf16_f32 v{AKV+5}, v{AKV+2}, v{AKV+3}")
    A(f"v_lshlrev_b32 v{V_K}, 4, v{V_K}")
    A(f"v_lshrrev_b32 v{V_V}, 5, v1")
    A(f"v_lshl_add_u32 v{V_K}, v{V_V}, 9, v{V_K}")
    A(f"v_bfe_u32 v{V_V}, v1, 4, 1")
    A(f"v_lshl_add_u32 v{V_K}, v{V_V}, 3, v{V_K}")
    A("s_lshr_b32 s48, s38, 11")
    A("s_lshl_b32 s48, s48, 10")
    A("s_bfe_u32 s42, s38, 0x1000a")
    A("s_lshl_b32 s42, s42, 8")
    A("s_add_u32 s48, s48, s42")
    A("s_add_u32 s48, s48, s58")
    A(f"buffer_store_dwordx2 {vr(AKV+4,2)}, v{V_K}, s[8:11], s48 offen")
    A(f"s_branch {lfin}")
    A(f"{lvv}:")
    A(f"v_lshlrev_b32 v{V_NRD}, 3, v{V_K}")
    A(f"v_add_u32 v{V_NRD}, {stl}, v{V_NRD}")
    A(f"ds_write_b64 v{V_NRD}, {vr(STT,2)}")
    A(f"v_lshrrev_b32 v{V_V}, 4, v1")
    A(f"v_lshlrev_b32 v{V_NRD}, 5, v{V_V}")
    A(f"v_add_u32 v{V_NRD}, {stl}, v{V_NRD}")
    A("s_waitcnt lgkmcnt(0)")
    A(f"ds_read_b128 {vr(STT+4,4)}, v{V_NRD}")
    A(f"ds_read_b128 {vr(STT+8,4)}, v{V_NRD} offset:16")
    A(f"v_lshlrev_b32 v{V_K}, 4, v{V_K}")
    A(f"v_and_b32 v{V_NRD}, 1, v{V_V}")
    A(f"v_lshl_add_u32 v{V_K}, v{V_NRD}, 3, v{V_K}")
    A(f"v_lshrrev_b32 v{V_V}, 1, v{V_V}")
    A(f"v_mul_u32_u24 v{V_V}, {VBLK}, v{V_V}")
    A(f"v_add_u32 v{V_K}, v{V_K}, v{V_V}")
    A("s_lshr_b32 s48, s38, 9")
    A(f"s_mul_i32 s48, s48, {VBLK}")
    A("s_add_u32 s48, s48, s58")
    A(f"s_add_u32 s48, s48, {VOFF}")
    A("s_waitcnt lgkmcnt(0)")
    for r in range(4):
        A(f"v_fmac_f32 v{AKV+r}, v{STT+4+2*r}, v{CSK+r}")
    for r in range(4):
        A(f"v_mul_f32 v{AKV+r}, v{STT+5+2*r}, v{AKV+r}")
    A(f"v_cvt_pk_bf16_f32 v{AKV+4}, v{AKV}, v{AKV+1}")
    A(f"v_cvt_pk_bf16_f32 v{AKV+5}, v{AKV+2}, v{AKV+3}")
    A(f"buffer_store_dwordx2 {vr(AKV+4,2)}, v{V_K}, s[8:11], s48 offen")
    A("s_mov_b32 exec_lo, 1")
    A("s_mov_b32 exec_hi, 1")
    A(f"buffer_store_dwordx4 {vr(ONES,4)}, v{V_V}, s[8:11], s48 offen offset:256")
    A("s_mov_b64 exec, -1")
    A(f"s_branch {lfin}")

def gen_layer(A):
    lbody, lend = A.label("body"), A.label("end")
    for name, val in (("layer1_kernel", 0), ("layer2_kernel", 1)):
        kernel_begin(A, name)
        A(f"s_mov_b32 s7, {val}")
        if val != 1:
            A(f"s_branch {lbody}")
    A(f"{lbody}:")
    A("s_cmp_ge_u32 s2, 256")
    A(f"s_cbranch_scc1 {lend}")
    stamp_init(A)
    A("s_load_dwordx2 s[32:33], s[0:1], 80")
    A("s_load_dwordx2 s[34:35], s[0:1], 64")
    A("s_load_dwordx2 s[14:15], s[0:1], 0")
    A("v_lshrrev_b32 v1, 6, v0")
    A("s_and_b32 s4, s2, 7")
    A("v_readfirstlane_b32 s3, v1")
    A("s_lshl_b32 s4, s4, 5")
    A("s_lshr_b32 s5, s2, 3")
    A("s_add_u32 s4, s4, s5")
    A("s_lshr_b32 s5, s4, 3")
    A("s_and_b32 s6, s4, 7")
    A("v_and_b32 v1, 63, v0")
    A("v_lshlrev_b32 v2, 4, v1")
    A(f"v_lshlrev_b32 v{V_L4}, 2, v1")
    A(f"v_mov_b32 v{V_Z}, 0")
    A(f"v_mov_b32 v{V_Z+1}, 0")
    A(f"v_mov_b32 v{V_ONE}, 1")
    A(f"v_mov_b32 v{V_T}, {MISC}")
    A(f"ds_write_b32 v{V_T}, v{V_Z} offset:{FLAG}")
    A(f"v_mov_b32 v{V_IPV}, 0xdddddddd")
    A(f"v_add_u32 v{V_WL}, {WL}, v2")
    A("v_and_b32 v20, 31, v1")
    A("v_lshrrev_b32 v21, 5, v1")
    A(f"s_mul_i32 s48, s3, {PB_S}")
    A(f"v_add_u32 v{V_FL}, s48, v2")
    A(f"v_add_u32 v{V_FL2}, s48, v{V_L4}")
    A(f"v_mul_u32_u24 v{V_V}, {VBLK}, v21")
    A(f"v_lshl_add_u32 v{V_V}, v20, 4, v{V_V}")
    A("v_cmp_lt_u32 vcc, 16, v20")
    A("v_mov_b32 v22, 0x7f000000")
    A("s_getreg_b32 s57, hwreg(HW_REG_XCC_ID, 0, 4)")
    A("s_add_u32 s57, s57, 1")
    A(f"v_cndmask_b32 v{V_V}, v{V_V}, v22, vcc")
    A("s_lshr_b32 s40, s3, 1")
    A(f"s_mul_i32 s40, s40, {PB_T}")
    A("s_and_b32 s48, s3, 1")
    A("s_lshl_b32 s42, s48, 8")
    A("s_add_u32 s42, s42, s40")
    A("s_lshl_b32 s48, s48, 6")
    A("s_add_u32 s40, s40, s48")
    A("s_add_u32 s40, s40, 2048")
    A("v_lshrrev_b32 v21, 4, v1")
    A(f"v_mul_u32_u24 v{V_NRD}, {2*PB_T}, v21")
    A("v_and_b32 v20, 15, v1")
    A(f"v_lshl_add_u32 v{V_NRD}, v20, 4, v{V_NRD}")
    A(f"v_add_u32 v{V_NRD}, s42, v{V_NRD}")
    A(f"v_lshlrev_b32 v{V_K}, 10, v20")
    A(f"v_lshl_add_u32 v{V_K}, v21, 5, v{V_K}")
    A("s_and_b32 s48, s7, 1")
    A(f"s_mul_i32 s46, s48, {KV2-KV1}")
    A(f"s_add_u32 s46, s46, {KV1}")
    A(f"s_mul_i32 s47, s3, {64*VBLK}")
    A("s_add_u32 s47, s47, s46")
    A(f"s_add_u32 s47, s47, {VOFF}")
    A("s_lshl_b32 s45, s3, 14")
    A("s_add_u32 s46, s46, s45")
    A("s_lshl_b32 s53, s48, 15")
    A(f"s_mov_b32 s58, {KV2}")
    A("s_lshl_b32 s41, s6, 16")
    A("s_add_u32 s41, s41, s45")
    A(f"s_add_u32 s36, s41, {WQF}")
    A(f"s_add_u32 s41, s41, {WOF}")
    A("s_lshl_b32 s39, s5, 16")
    A("s_add_u32 s39, s39, s45")
    A("s_lshl_b32 s44, s6, 11")
    A("s_add_u32 s44, s44, s39")
    A("s_lshr_b32 s38, s39, 4")
    A(f"s_add_u32 s45, s45, {WL}")
    A("s_lshr_b32 s37, s6, 1")
    A("s_lshl_b32 s37, s37, 8")
    A("s_and_b32 s48, s6, 1")
    A("s_lshl_b32 s48, s48, 3")
    A("s_add_u32 s37, s37, s48")
    A(f"s_mov_b32 s52, {L_LO:#x}")
    A(f"s_mov_b32 s54, {L_HI - L_LO:#x}")
    A("s_lshl_b32 s48, s5, 7")
    A("s_add_u32 s53, s53, s48")
    A(f"s_add_u32 s53, s53, {FLG}")
    A("s_lshl_b32 s59, s6, 2")
    A("s_add_u32 s59, s59, s3")
    A("s_lshl_b32 s59, s59, 2")
    A("s_add_u32 s59, s59, s53")
    A("s_add_u32 s49, s6, 1")
    A("s_lshr_b32 s49, s49, 1")
    A("s_min_u32 s49, s49, 3")
    A("s_mul_i32 s50, s6, 5")
    A("s_add_u32 s49, s49, s50")
    A("s_add_u32 s51, s6, 2")
    A("s_lshr_b32 s51, s51, 1")
    A("s_min_u32 s51, s51, 3")
    A("s_add_u32 s51, s51, s50")
    A("s_add_u32 s51, s51, 5")
    A("s_sub_u32 s51, s51, s49")
    A("s_lshl_b32 s62, s3, 15")
    A("s_lshl_b32 s63, s3, 14")
    A(f"s_add_u32 s63, s63, {8*16384}")
    A(f"s_mul_i32 s55, s3, {11*4096}")
    A("s_waitcnt lgkmcnt(0)")
    make_srd(A, 8, 32, WS_USED)
    make_srd(A, 12, 14, 2048*1024)
    A("s_lshl_b32 s48, s49, 15")
    A(f"s_add_u32 s48, s48, {W1F}")
    A("s_lshl_b32 s42, s51, 15")
    make_srd(A, 16, 32, "s42", add="s48")
    A(f"s_mul_i32 s48, s6, {43*4096}")
    A(f"s_add_u32 s48, s48, {W2F}")
    make_srd(A, 20, 32, 43*4096, add="s48")
    A(f"s_mul_i32 s48, s5, {43*4096}")
    A(f"s_add_u32 s48, s48, {HX}")
    make_srd(A, 28, 32, 43*4096, add="s48")
    A("s_lshl_b32 s42, s49, 12")
    A("s_add_u32 s48, s48, s42")
    A("s_lshl_b32 s42, s51, 12")
    make_srd(A, 24, 32, "s42", add="s48")

    vm = Cnt(A, "vmcnt", 63)
    lg = Cnt(A, "lgkmcnt", 15)
    NW2 = gen_attention(A, vm, lg)
    lslow, lback = A.label("slow"), A.label("back")
    A("s_waitcnt lgkmcnt(0)")
    A("s_barrier")
    A(f"ds_read_b32 v{V_T}, v{V_MISC} offset:{FLAG}")
    vm.need(("xid",))
    lx = A.label("xidok")
    A("s_mov_b64 exec, 0xff")
    A(f"v_cmp_eq_u32 vcc, 0, v{V_XID}")
    A("s_mov_b32 s48, s53")
    A("s_nop 3")
    A(f"s_cbranch_vccz {lx}")
    wait_flags(A, V_L4, acquire=False)
    A(f"{lx}:")
    A(f"v_cmp_ne_u32 vcc, s57, v{V_XID}")
    A("s_mov_b64 exec, -1")
    A("s_nop 3")
    A("s_cmp_lg_u64 vcc, 0")
    A("s_cselect_b32 s56, 1, %d" % (1 if FORCE_XMODE else 0))
    A("s_waitcnt lgkmcnt(0)")
    A(f"v_readfirstlane_b32 s48, v{V_T}")
    A("s_cmp_lg_u32 s48, 0")
    A(f"s_cbranch_scc1 {lslow}")
    A(f"{lback}:")
    CS1, ONES = 16, 28
    for r in range(4):
        A(f"v_mov_b32 v{ONES+r}, 0x3f803f80")
    unpack8(A, ACC16, XT)
    unpack8(A, ACC16+8, XT+4)
    def cs1(lo, hi):
        for f in range(lo, hi):
            mfma16(A, CS1+4*(f % 3), R(W1R[f], 4), vr(ONES, 4), f < 3)
    cs1(0, 6)
    publish(A, 1)
    vm.mark_all_done()
    stamp(A, "pub1")
    for n in range(8):
        aread(A, lg, n, "ao")
    cs1(6, 24)
    wait_same_wave(A, 1)
    stamp(A, "w1")
    def mk_bload(regs, src):
        def bload(ks):
            if ks % 4 == 0:
                A(f"s_add_u32 s48, s39, {src + ks*1024}")
            A(f"buffer_load_dwordx4 {R(regs[ks],4)}, v2, s[8:11], s48 offen offset:{(ks % 4)*1024} sc1"); vm.issue(("b", ks))
        return bload
    bl = mk_bload(BO, OF)
    for ks in range(8):
        bl(ks)
        if ks >= 2:
            cs1(24 + 2*(ks-2), 24 + 2*(ks-1))
    gemm64_core(A, vm, lg, lambda ks: R(BO[ks], 4), ACC16, None, True, tag="ao", pre=False, init=False, bload=bl)
    stamp(A, "oproj")
    VX = [V_NRD, V_IPV, V_K, V_V]
    VH = 104
    for t in range(4):
        A(f"s_add_u32 s42, s3, {t}")
        A("s_and_b32 s42, s42, 3")
        A("s_lshl_b32 s48, s42, 14")
        A(f"v_add_u32 v{VX[t]}, s48, v2")
    for i in range(8):
        A(f"v_cvt_pk_bf16_f32 v{XT+i}, v{ACC16+2*i}, v{ACC16+2*i+1}")
    A("s_lshl_b32 s48, s4, 13")
    A("s_lshl_b32 s42, s3, 11")
    A("s_add_u32 s48, s48, s42")
    A(f"s_add_u32 s48, s48, {X1F}")
    for e in range(2):
        A(f"buffer_store_dwordx4 {vr(XT+4*e,4)}, v2, s[8:11], s48 offen offset:{e*1024}")
    stats_store(A, ACC16, 32, ST1)
    publish(A, 2)
    vm.mark_all_done()
    stamp(A, "pub2")
    cs1(36, 48)
    ACC = [32, 44]
    BF, NBF = 56, 6
    T4 = 80
    HP = 92
    STT = 80
    SPR = [108, 110, 28, 30]
    A("s_lshl_b32 s60, s3, 12")
    A("s_lshr_b32 s61, s3, 1")
    A("s_lshl_b32 s61, s61, 12")
    A("s_and_b32 s42, s3, 1")
    A("s_lshl_b32 s42, s42, 3")
    A("s_add_u32 s61, s61, s42")
    A(f"s_add_u32 s61, s61, {4*4096}")
    V_ST = V_FL2
    A(f"v_and_b32 v{V_ST}, 15, v1")
    A(f"v_lshlrev_b32 v{V_ST}, 3, v{V_ST}")
    A(f"v_add_u32 v{V_ST}, {MISC + STL}, v{V_ST}")
    for t in range(4):
        A(f"s_add_u32 s42, s3, {t}")
        A("s_and_b32 s42, s42, 3")
        A("s_lshl_b32 s42, s42, 10")
        A(f"v_add_u32 v{VH+t}, s42, v2")
    A("s_lshl_b32 s41, s5, 16")
    A("s_lshl_b32 s42, s3, 11")
    A("s_add_u32 s41, s41, s42")
    A("s_lshl_b32 s42, s3, 14")
    stamp(A, "cs1")
    wait_same_wave(A, 2)
    stamp(A, "w2")
    def xdma(k):
        pr, e = k >> 1, k & 1
        if e == 0:
            A(f"s_add_u32 m0, s42, {XL + pr*2048}")
            A(f"s_add_u32 s40, s41, {X1F + pr*8192}")
        A(f"buffer_load_dwordx4 v2, s[8:11], s40 offen offset:{e*1024} sc1 lds"); vm.issue(("xl", k))
    XAH = 8
    for k in range(XAH):
        xdma(k)
        if k == 5:
            stats_load(A, vm, STT, ST1)
    def silu_ops(acc, hp, sp):
        ops = []
        for k in range(12):
            ops.append(f"v_fmac_f32 v{acc+k}, v{sp}, v{CS1+k}")
        for k in range(12):
            ops.append(f"v_mul_f32 v{T4+k}, v{sp+1}, v{acc+k}")
        for k in range(12):
            ops.append(f"v_exp_f32 v{T4+k}, v{T4+k}")
        for k in range(12):
            ops.append(f"v_add_f32 v{T4+k}, 1.0, v{T4+k}")
        for k in range(12):
            ops.append(f"v_rcp_f32 v{T4+k}, v{T4+k}")
        for k in range(12):
            ops.append(f"v_mul_f32 v{T4+k}, v{acc+k}, v{T4+k}")
        for k in range(6):
            ops.append(f"v_cvt_pk_bf16_f32 v{hp+k}, v{T4+2*k}, v{T4+2*k+1}")
        return ops
    def h_store(p, k):
        hp = HP + 6*(p & 1)
        if k == 0:
            A(f"buffer_store_dwordx4 {vr(hp,4)}, v{VH+p}, s[24:27], s60 offen"); vm.issue(("st",))
        else:
            A(f"buffer_store_dwordx2 {vr(hp+4,2)}, v{VH+p}, s[24:27], s61 offen"); vm.issue(("st",))
    def wq_dma(k):
        l = A.label("nowq")
        A(f"s_cbranch_scc1 {l}")
        wl_dma(A, vm, k, 36)
        A(f"{l}:")
    def w2_late(n):
        A(f"s_add_u32 s50, s55, {(n & ~3)*1024}")
        A(f"buffer_load_dwordx4 {R(W2R[n],4)}, v2, s[20:23], s50 offen offset:{(n % 4)*1024}"); vm.issue(("w2", n))
    later = {}
    for i, n in enumerate(range(NW2, 44)):
        later[16 + 2*i] = lambda n=n: w2_late(n)
    for k in range(16):
        g = 20 + 2*k + (2 if k >= 6 else 0) + (2 if k >= 13 else 0)
        later[g] = lambda k=k: wq_dma(k)
    def bread(g):
        p, ks = g >> 4, g & 15
        if p == 0:
            vm.need(("xl", ks))
        A(f"ds_read_b128 {vr(BF+4*(g % NBF),4)}, v{VX[p]} offset:{XL + ks*1024}"); lg.issue(("b", g))
    PRE = NBF - 1
    PRE0 = 2
    for g in range(PRE0):
        bread(g)
    nread = PRE0
    pend = ["WST"] + stats_ops(STT) + [
        f"v_mov_b32 v{V_RS}, v{STT+1}",
        f"v_mov_b32 v{SPR[0]}, v{STT}",
        f"v_mul_f32 v{SPR[0]+1}, {f32bits(-1.4426950408889634):#x}, v{STT+1}",
        f"v_lshrrev_b32 v{STT+2}, 10, v{VH}",
        f"v_lshl_add_u32 v{STT+2}, v{STT+2}, 7, v{V_ST}",
        "DSW"]
    for t in range(1, 4):
        pend += [f"v_lshrrev_b32 v{STT+2+t}, 10, v{VH+t}", f"v_lshl_add_u32 v{STT+2+t}, v{STT+2+t}, 7, v{V_ST}"]
    cost = lambda op: 8 if ("v_exp" in op or "v_rcp" in op or "v_rsq" in op) else 4
    lg.need(("b", 0))
    for g in range(64):
        p, ks = g >> 4, g & 15
        if ks == 0:
            stamp(A, f"pass{p}")
            assert not pend or p == 0
            if p > 0:
                pend = silu_ops(ACC[(p-1) & 1], HP + 6*((p-1) & 1), SPR[p-1])
        if g == 16 - PRE0:
            assert not pend and nread == 16
            lg.need(("stw",))
            A("s_barrier")
            for t in range(1, 4):
                A(f"ds_read_b64 {vr(SPR[t],2)}, v{STT+2+t}"); lg.issue(("sp",))
        for mt in range(3):
            mfma16(A, ACC[p & 1]+4*mt, R(W1R[ks*3+mt], 4), vr(BF+4*(g % NBF), 4), ks == 0)
            lim = g + (PRE0 if g < 16 - PRE0 else PRE)
            if (mt == 0 or (mt == 1 and g >= 16 - PRE0 and g not in later)) and nread <= lim and nread < 64:
                bread(nread); nread += 1
            if mt == 0 and g in later and g >= 20:
                A("s_cmp_eq_u32 s7, 1")
            if mt == 1:
                if g + XAH < 16:
                    xdma(g + XAH)
                if p >= 2 and ks < 2:
                    assert g not in later
                    h_store(p-2, ks)
                elif g in later:
                    later.pop(g)()
            if mt == 2 and g < 63:
                lg.need(("b", g+1))
            slot = ks*3 + mt
            if pend and ((p == 0 and ks >= 5) or (p > 0 and slot >= 4)):
                left = 48 - slot
                budget = max(8, -(-sum(map(cost, pend)) // left)) if p > 0 else 8
                while pend and budget > 0:
                    op = pend.pop(0)
                    if op == "DSW":
                        A(f"ds_write_b64 v{STT+2}, {vr(SPR[0],2)}"); lg.issue(("stw",))
                    elif op == "WST":
                        vm.need(("stat",))
                        continue
                    else:
                        A(op)
                    budget -= cost(op)
    assert not later and not pend
    stamp(A, "pass4")
    h_store(2, 0); h_store(2, 1)
    A("s_nop 5")
    for op in silu_ops(ACC[1], HP+6, SPR[3]):
        A(op)
    h_store(3, 0); h_store(3, 1)
    stamp(A, "silu")
    publish(A, 3)
    vm.mark_all_done()
    A("s_barrier")
    stamp(A, "pub3")
    HR = [('v', 120+4*k) for k in range(34)] + [('a', 192+4*k) for k in range(10)]
    A(f"s_mul_i32 s42, s3, {12*1024}")
    A(f"v_add_u32 v{VX[0]}, s42, v2")
    for t in range(1, 4):
        A(f"s_add_u32 s42, s3, {4-t}")
        A("s_and_b32 s42, s42, 3")
        A(f"s_mul_i32 s42, s42, {12*1024}")
        A(f"v_add_u32 v{VX[t]}, s42, v2")
    XF = 16
    unpack8(A, XF, XT)
    unpack8(A, XF+8, XT+4)
    wait_two_members(A, 3)
    stamp(A, "w3")
    TORD = [1, 2, 3, 0]
    def hload(n):
        t, ks = TORD[n // 11], n % 11
        A(f"s_add_u32 s51, s55, {ks*4096}")
        A(f"buffer_load_dwordx4 {R(HR[n],4)}, v{VH+t}, s[28:31], s51 offen sc1"); vm.issue(("h", n))
    AHEAD = 8
    for n in range(AHEAD):
        hload(n)
    AC2 = 32
    acc2 = lambda t, c: AC2 + (t*4 + c)*4
    pend = []
    for n in range(44):
        t, ks = TORD[n // 11], n % 11
        if n == 0:
            vm.need(("h", n))
        if t == 0 and ks == 4:
            lg.all()
            A("s_barrier")
            stamp(A, "rbar")
        if t == 0 and ks == 7:
            pend = [("W", 8)] + [f"v_add_f32 v{AC2+16+i}, v{AC2+16+i}, v{AC2+32+i}" for i in range(16)] + [("W", 12)] + \
                   [f"v_add_f32 v{AC2+16+i}, v{AC2+16+i}, v{AC2+48+i}" for i in range(16)]
        for c in range(4):
            mfma16(A, acc2(t, c), R(W2R[ks*4+c], 4), R(HR[n], 4), ks == 0)
            if c == 0 and n + AHEAD < 44:
                hload(n+AHEAD)
            if c == 3 and n < 43:
                vm.need(("h", n+1))
            if n >= 11 and ks == 2:
                pt = TORD[n // 11 - 1]
                A(f"ds_write_b128 v{VX[0]}, {vr(acc2(pt,c),4)} offset:{RB + ((pt-1)*4 + c)*1024}"); lg.issue(("rw",))
            if t == 0 and 4 <= ks <= 6:
                tt = ks - 3
                A(f"ds_read_b128 {vr(acc2(tt,c),4)}, v{VX[tt]} offset:{RB + ((tt-1)*4 + c)*1024}"); lg.issue(("rr", (tt-1)*4 + c + 1))
            k = 0
            while pend and k < 2:
                op = pend.pop(0)
                if isinstance(op, tuple):
                    lg.need(("rr", op[1]))
                else:
                    A(op); k += 1
    assert not pend
    stamp(A, "f2done")
    WKV = 120
    CSQ, ONES, CSK, AKV, STT = 184, 204, 200, 208, 216
    def kv_weights():
        lnk = A.label("nokvw")
        A("s_lshr_b32 s42, s6, 1")
        A("s_cmp_lg_u32 s42, s3")
        A(f"s_cbranch_scc1 {lnk}")
        A("s_and_b32 s42, s6, 1")
        A("s_lshl_b32 s42, s42, 14")
        for ks in range(16):
            if ks % 4 == 0:
                A(f"s_add_u32 s48, s42, {WKVF + ks*1024}")
            A(f"buffer_load_dwordx4 {vr(WKV+4*ks,4)}, v2, s[8:11], s48 offen offset:{(ks%4)*1024}")
        A(f"{lnk}:")
    lnk2 = A.label("nokvw2")
    A("s_cmp_eq_u32 s7, 1")
    A(f"s_cbranch_scc1 {lnk2}")
    A("s_lshl_b32 s48, s6, 8")
    A(f"s_add_u32 s48, s48, {CSB}")
    A(f"v_lshrrev_b32 v{V_T}, 4, v1")
    A(f"v_lshlrev_b32 v{V_T}, 6, v{V_T}")
    for k in range(4):
        A(f"buffer_load_dwordx4 {vr(CSQ+4*k,4)}, v{V_T}, s[8:11], s48 offen offset:{k*16}")
    A("s_and_b32 s48, s6, 1")
    A("s_lshl_b32 s48, s48, 10")
    A(f"s_add_u32 s48, s48, {CSB + 2048}")
    A(f"buffer_load_dwordx4 {vr(CSK,4)}, v2, s[8:11], s48 offen")
    kv_weights()
    A(f"{lnk2}:")
    for i in range(16):
        A(f"v_fmac_f32 v{XF+i}, v{V_RS}, v{AC2+16+i}")
    for i in range(0, 16, 2):
        A(f"v_pk_fma_f32 {vr(XF+i,2)}, {vr(AC2+i,2)}, {vr(V_RS,2)}, {vr(XF+i,2)} op_sel_hi:[1,0,1]")
    for i in range(8):
        A(f"v_cvt_pk_bf16_f32 v{XT+i}, v{XF+2*i}, v{XF+2*i+1}")
    llast, lfin, lqkv = A.label("last"), A.label("fin"), A.label("qkv")
    A("s_cmp_eq_u32 s7, 1")
    A(f"s_cbranch_scc1 {llast}")
    A(f"s_add_u32 s48, s44, {X2F}")
    for e in range(2):
        A(f"buffer_store_dwordx4 {vr(XT+4*e,4)}, v2, s[8:11], s48 offen offset:{e*1024}")
    stats_store(A, XF, 32, ST2)
    publish(A, 4)
    stamp(A, "pub4")
    A(f"{lqkv}:")
    vm = Cnt(A, "vmcnt", 63)
    lg = Cnt(A, "lgkmcnt", 15)
    for r in range(4):
        A(f"v_mov_b32 v{ONES+r}, 0x3f803f80")
    for n in range(8):
        aread(A, lg, n, "aq")
    stamp(A, "csq")
    kv_kind(A)
    wait_same_wave(A, 4)
    stamp(A, "w4")
    bl = mk_bload(BR, X2F)
    for ks in range(8):
        bl(ks)
    gemm64_core(A, vm, lg, lambda ks: R(BR[ks], 4), ACC16, None, True, tag="aq", pre=False,
                bload=lambda ks: (bl(ks), stats_load(A, vm, STT, ST2) if ks == 15 else None))
    kv_mfmas(A, AKV, lambda ks: R(BR[ks], 4), WKV)
    stamp(A, "qgemm")
    vm.need(("stat",))
    for op in stats_ops(STT):
        A(op)
    q_epilogue(A, ACC16, CSQ, STT, XT)
    kv_epilogue(A, AKV, CSK, STT, ONES, lfin, MISC + STL)
    A(f"{llast}:")
    make_srd(A, 12, 34, 2048*1024)
    A(f"v_and_b32 v{V_K}, 15, v1")
    A(f"v_lshlrev_b32 v{V_K}, 10, v{V_K}")
    A(f"v_lshrrev_b32 v{V_T}, 4, v1")
    A(f"v_lshl_add_u32 v{V_K}, v{V_T}, 5, v{V_K}")
    A("s_lshl_b32 s48, s6, 7")
    A("s_add_u32 s48, s48, s39")
    for h in range(2):
        A(f"buffer_store_dwordx4 {vr(XT+4*h,4)}, v{V_K}, s[12:15], s48 offen offset:{16*h}")
    A(f"{lfin}:")
    stamp(A, "fin")
    stamp_flush(A)
    A(f"{lend}:")
    A("s_endpgm")
    gen_slow(A, lslow, lback, NW2)
```

```python
from common import *
import layer as L
from layer import V_T, V_K, V_V, V_NRD, mfma16

WQL = 0
XS = 65536
KVR = 131072
JOBL = KVR
STL = 147456
FRONT_LDS = STL + 1024
JOB_SC = os.environ.get('JOB_SC', 'sc1')
TOUCH = os.environ.get('FTOUCH', '1') == '1'
BX = 16
ONES = 112

def weight_job(A, kind):
    ptr = {"wq": 18, "wo": 24, "w1": 28, "w2": 30}[kind]
    nbytes = {"wq": 512*1024, "wo": 512*1024, "w1": 512*2752, "w2": 1376*1024}[kind]
    stride = 2752 if kind == "w1" else 1024
    nks = 43 if kind == "w2" else 16
    make_srd(A, 12, ptr, nbytes)
    if kind == "w1":
        A("s_and_b32 s37, s6, 15")
        A("s_lshr_b32 s36, s6, 4")
    else:
        A("s_and_b32 s36, s6, 3")
        A("s_lshr_b32 s37, s6, 2")
    A(f"v_mul_u32_u24 v5, {stride}, v4")
    A("v_lshl_add_u32 v5, v3, 4, v5")
    if kind == "w2":
        A(f"s_mul_i32 s38, s37, {32*stride}")
        rowofs = lambda n: 4*(n >> 1) + 16*(n & 1)
    else:
        A("s_lshr_b32 s38, s37, 1")
        A("s_lshl_b32 s38, s38, 3")
        A("s_and_b32 s39, s37, 1")
        A("s_add_u32 s38, s38, s39")
        A(f"s_mul_i32 s38, s38, {8*stride}")
        rowofs = lambda n: 16*(n >> 1) + 4*(n & 1)
    A("s_lshl_b32 s39, s36, 8")
    A("s_add_u32 s38, s38, s39")
    for n in range(8):
        A(f"s_add_u32 s39, s38, {rowofs(n)*stride}")
        A(f"buffer_load_dwordx4 {vr(48+4*n,4)}, v5, s[12:15], s39 offen")
    for k in range(2):
        A("v_add_u32 v8, 16384, v8")
        A("v_min_u32 v9, L_code_end-front_kernel-4, v8")
        A("global_load_dword v183, v9, s[52:53]")
    A("s_waitcnt vmcnt(10)")
    A("s_barrier")
    A("v_add_u32 v5, s45, v2")
    A("v_lshlrev_b32 v6, 11, v4")
    A("v_lshrrev_b32 v7, 2, v3")
    A("v_lshl_add_u32 v6, v7, 8, v6")
    A("v_and_b32 v7, 3, v3")
    A(f"v_lshl_add_u32 v6, v7, {3 if kind == 'w1' else 5}, v6")
    A("v_add_u32 v6, s45, v6")
    if kind != "w1":
        A(f"s_mul_i32 s38, s36, {2*nks}")
        A("s_add_u32 s38, s38, s37")
        A("s_lshl_b32 s38, s38, 12")
        A(f"s_add_u32 s38, s38, {dict(wq=WQF, wo=WOF, w2=W2F)[kind]}")
    else:
        A("s_lshl_b32 s38, s36, 17")
        A("s_lshl_b32 s39, s37, 10")
        A("s_add_u32 s38, s38, s39")
        A(f"s_add_u32 s38, s38, {W1F}")
    A("s_waitcnt vmcnt(2)")
    stamp(A, 2)
    for n in range(8):
        A(f"ds_write_b128 v5, {vr(48+4*n,4)} offset:{n*1024}")
    A("s_waitcnt lgkmcnt(0)")
    for t in range(8):
        off = 32*t if kind == "w1" else 128*(t >> 2) + 8*(t & 3)
        A(f"ds_read_b64_tr_b16 {vr(16+4*t,2)}, v6 offset:{off}")
        A(f"ds_read_b64_tr_b16 {vr(18+4*t,2)}, v6 offset:{off+1024}")
    for t in range(8):
        A(f"s_waitcnt lgkmcnt({14-2*t})")
        if kind == "w1":
            A(f"s_add_u32 s39, s38, {t*16384}")
            A(f"buffer_store_dwordx4 {vr(16+4*t,4)}, v2, s[8:11], s39 offen {JOB_SC}")
        else:
            if t == 4:
                A(f"s_add_u32 s38, s38, {nks*4096}")
            A(f"buffer_store_dwordx4 {vr(16+4*t,4)}, v2, s[8:11], s38 offen offset:{(t & 3)*1024} {JOB_SC}")
    stamp(A, 6)
    stamp_flush(A)
    A("s_endpgm")

def x_read_addrs(A, sbase):
    A("v_lshlrev_b32 v84, 1, v4")
    A("v_xor_b32 v84, v84, v3")
    A("v_lshlrev_b32 v84, 4, v84")
    A("v_lshl_add_u32 v84, v3, 10, v84")
    A(f"v_add_u32 v84, s{sbase}, v84")
    for k in range(4):
        A(f"v_xor_b32 v{80+k}, {(8*(k >> 1) + (k & 1))*16}, v84")

def x_reads(A, lg):
    for ks in range(16):
        p, e = ks >> 1, ks & 1
        A(f"ds_read_b128 {vr(BX+4*ks,4)}, v{80 + 2*(p & 1) + e} offset:{(p >> 1)*256}"); lg.issue(("x", ks))

def row_stats(A, lg, STT):
    A("s_mov_b32 s42, 0x3f803f80")
    for k in range(4):
        A(f"v_mov_b32 v{STT+k}, 0")
    for ks in range(16):
        lg.need(("x", ks))
        for r in range(4):
            o = 2*(r & 1)
            A(f"v_dot2_f32_bf16 v{STT+o}, v{BX+4*ks+r}, s42, v{STT+o}")
            A(f"v_dot2_f32_bf16 v{STT+o+1}, v{BX+4*ks+r}, v{BX+4*ks+r}, v{STT+o+1}")
    A("s_nop 2")
    for op in L.stats_ops(STT):
        A(op)

def wq_dma(A):
    A("v_lshrrev_b32 v5, 3, v1")
    A("v_and_b32 v6, 2, v5")
    A("v_and_b32 v7, 7, v1")
    A("v_xor_b32 v6, v6, v7")
    A("v_lshlrev_b32 v6, 4, v6")
    A("v_lshl_add_u32 v5, v5, 10, v6")
    A("v_xor_b32 v6, 64, v5")
    A("s_and_b32 s41, s3, 3")
    A("s_lshl_b32 s40, s41, 17")
    A("s_lshl_b32 s42, s6, 7")
    A("s_add_u32 s40, s40, s42")
    A("s_lshl_b32 s41, s41, 14")
    make_srd(A, 56, 18, 512*1024)
    for n in range(16):
        A(f"s_add_u32 m0, s41, {WQL + n*1024}")
        A(f"s_add_u32 s42, s40, {n*8192}")
        A(f"buffer_load_dwordx4 v{5 + ((n >> 1) & 1)}, s[56:59], s42 offen lds")

def gen_front(A, name):
    kernel_begin(A, name)
    lend, lkv, lw = A.label("end"), A.label("kvwave"), A.label("wjob")
    A("s_cmp_ge_u32 s2, 256")
    A(f"s_cbranch_scc1 {lend}")
    stamp_init(A)
    A("s_load_dwordx16 s[16:31], s[0:1], 0")
    A("s_load_dwordx2 s[32:33], s[0:1], 80")
    A("v_lshrrev_b32 v1, 6, v0")
    A("s_and_b32 s4, s2, 7")
    A("v_readfirstlane_b32 s3, v1")
    A("v_and_b32 v1, 63, v0")
    A("v_lshlrev_b32 v2, 4, v1")
    A("v_and_b32 v3, 15, v1")
    A("v_lshrrev_b32 v4, 4, v1")
    A("s_lshl_b32 s4, s4, 5")
    A("s_lshr_b32 s5, s2, 3")
    A("s_add_u32 s4, s4, s5")
    A("s_lshr_b32 s5, s4, 3")
    A("s_and_b32 s6, s4, 7")
    A("s_cmp_ge_u32 s3, 5")
    A(f"s_cbranch_scc1 {lw}")
    for r in range(4):
        A(f"v_mov_b32 v{ONES+r}, 0x3f803f80")
    A("s_cmp_eq_u32 s3, 4")
    A(f"s_cbranch_scc1 {lkv}")
    vm = Cnt(A, "vmcnt", 63); lg = Cnt(A, "lgkmcnt", 15)
    RING, NR, ACC, CSQ, STT, XT, VA = 88, 6, 116, 132, 148, 152, 160
    A("s_lshl_b32 s39, s5, 16")
    A("s_lshl_b32 s45, s3, 14")
    A("s_add_u32 s39, s39, s45")
    A(f"s_add_u32 s46, s45, {XS}")
    A("s_waitcnt lgkmcnt(0)")
    make_srd(A, 8, 32, WS_USED)
    make_srd(A, 12, 16, 2048*1024)
    stamp(A, 1)
    if TOUCH:
        lt1, lt2 = A.label("tq"), A.label("td")
        make_srd(A, 48, 18, 512*1024)
        A("v_lshlrev_b32 v7, 7, v1")
        A("s_cmp_lg_u32 s3, 0")
        A(f"s_cbranch_scc1 {lt1}")
        A("s_lshl_b32 s42, s4, 13")
        A("buffer_load_dword v182, v7, s[12:15], s42 offen")
        A(f"s_branch {lt2}")
        A(f"{lt1}:")
        A("s_lshr_b32 s42, s2, 3")
        A("s_lshl_b32 s42, s42, 1")
        A("s_add_u32 s42, s42, s3")
        A("s_sub_u32 s42, s42, 1")
        A("s_lshl_b32 s42, s42, 13")
        A("s_cmp_eq_u32 s3, 3")
        A(f"s_cbranch_scc1 {lt2}")
        A("buffer_load_dword v182, v7, s[48:51], s42 offen")
        A(f"{lt2}:")
    for r in range(16):
        A(f"v_xor_b32 v7, {16*r}, v2")
        if r % 4 == 0:
            A(f"s_add_u32 m0, s46, {r*1024}")
            A(f"s_add_u32 s42, s39, {r*1024}")
        A(f"buffer_load_dwordx4 v7, s[12:15], s42 offen offset:{(r % 4)*1024} lds"); vm.issue(("x",))
    for r in range(4):
        A(f"v_mov_b32 v{CSQ+r}, 0")
    A("s_lshl_b32 s42, s2, 8")
    A("s_lshl_b32 s43, s3, 6")
    A("s_add_u32 s42, s42, s43")
    A(f"s_add_u32 s42, s42, {FLG}")
    A("s_mov_b64 exec, 15")
    A(f"buffer_store_dwordx4 {vr(CSQ,4)}, v2, s[8:11], s42 offen"); vm.issue(("st",))
    A("s_mov_b64 exec, -1")
    x_read_addrs(A, 46)
    A("v_lshrrev_b32 v5, 2, v3")
    A("v_lshlrev_b32 v6, 11, v4")
    A("v_lshl_add_u32 v6, v5, 7, v6")
    A("v_and_b32 v7, 3, v3")
    A("v_lshl_add_u32 v6, v7, 3, v6")
    A("v_lshrrev_b32 v5, 1, v5")
    A("v_lshl_add_u32 v6, v5, 5, v6")
    A("v_and_b32 v5, 1, v4")
    A("v_lshl_add_u32 v6, v5, 6, v6")
    A("s_lshl_b32 s42, s3, 5")
    A(f"v_xor_b32 v{VA}, s42, v6")
    A("v_lshlrev_b32 v7, 3, v3")
    A(f"v_add_u32 v7, {STL}, v7")
    A("s_lshl_b32 s42, s3, 7")
    A("v_add_u32 v5, s42, v7")
    vm.need(("x",))
    stamp(A, 2)
    x_reads(A, lg)
    row_stats(A, lg, STT)
    A(f"ds_write_b64 v5, {vr(STT,2)}"); lg.issue(("sw",))
    for k in range(4):
        A(f"v_subrev_u32 v{80+k}, s45, v{80+k}")
    lg.all()
    stamp(A, 4)
    A("s_barrier")
    AF = BX
    SP = XT
    def ard(ks):
        off = WQL + (64*(ks >> 1) + 8*(ks & 1))*128
        A(f"ds_read_b64_tr_b16 {vr(AF+4*ks,2)}, v{VA} offset:{off}"); lg.issue(("a", ks))
        A(f"ds_read_b64_tr_b16 {vr(AF+4*ks+2,2)}, v{VA} offset:{off+512}"); lg.issue(("a", ks))
    def brd(n):
        ks, nt = n >> 2, n & 3
        p, e = ks >> 1, ks & 1
        A(f"ds_read_b128 {vr(RING+4*(n % NR),4)}, v{80 + 2*(p & 1) + e} offset:{nt*16384 + (p >> 1)*256}"); lg.issue(("b", n))
    ard(0)
    for n in range(4): brd(n)
    ard(1)
    for n in range(4, NR): brd(n)
    for n in range(64):
        ks, nt = n >> 2, n & 3
        if nt == 0:
            lg.need(("a", ks))
            mfma16(A, CSQ, vr(AF+4*ks, 4), vr(ONES, 4), ks == 0)
            if ks + 2 < 16:
                ard(ks+2)
        lg.need(("b", n))
        mfma16(A, ACC+4*nt, vr(AF+4*ks, 4), vr(RING+4*(n % NR), 4), ks == 0)
        if n + NR < 64:
            brd(n + NR)
        elif n + NR < 68:
            A(f"ds_read_b64 {vr(SP+2*(n+NR-64),2)}, v7 offset:{(n+NR-64)*128}"); lg.issue(("sp",))
    stamp(A, 5)
    A("v_lshrrev_b32 v5, 1, v4")
    A("v_lshlrev_b32 v5, 9, v5")
    A("v_lshl_add_u32 v5, v3, 4, v5")
    A("v_and_b32 v6, 1, v4")
    A("v_lshl_add_u32 v5, v6, 3, v5")
    A("s_lshl_b32 s48, s4, 13")
    A("s_lshl_b32 s42, s3, 11")
    A("s_add_u32 s48, s48, s42")
    A(f"s_add_u32 s48, s48, {QFB}")
    A("s_waitcnt lgkmcnt(0)")
    for nt in range(4):
        for r in range(4):
            A(f"v_fmac_f32 v{ACC+4*nt+r}, v{SP+2*nt}, v{CSQ+r}")
        for r in range(4):
            A(f"v_mul_f32 v{ACC+4*nt+r}, v{SP+2*nt+1}, v{ACC+4*nt+r}")
        for h in range(2):
            A(f"v_cvt_pk_bf16_f32 v{RING+2*nt+h}, v{ACC+4*nt+2*h}, v{ACC+4*nt+2*h+1}")
        A(f"buffer_store_dwordx2 {vr(RING+2*nt,2)}, v5, s[8:11], s48 offen offset:{(nt >> 1)*1024 + (nt & 1)*256}")
    lnc = A.label("nocs")
    A("s_cmp_lg_u32 s5, 0")
    A(f"s_cbranch_scc1 {lnc}")
    A("s_lshl_b32 s43, s6, 8")
    A("s_lshl_b32 s42, s3, 6")
    A("s_add_u32 s43, s43, s42")
    A(f"s_add_u32 s43, s43, {CSB}")
    A("v_lshlrev_b32 v6, 4, v4")
    A(f"buffer_store_dwordx4 {vr(CSQ,4)}, v6, s[8:11], s43 offen")
    A(f"{lnc}:")
    stamp(A, 6)
    stamp_flush(A)
    A("s_endpgm")
    A(f"{lkv}:")
    lg = Cnt(A, "lgkmcnt", 15)
    WKV, AKV, CSK, STT2 = 116, 88, 96, 100
    A("s_lshr_b32 s43, s4, 1")
    A("s_lshl_b32 s38, s43, 10")
    A("s_and_b32 s60, s6, 1")
    A("s_add_u32 s60, s60, 1")
    A("s_lshr_b32 s46, s6, 1")
    A("s_lshl_b32 s46, s46, 14")
    A(f"s_add_u32 s46, s46, {XS}")
    A("v_lshlrev_b32 v5, 9, v4")
    A("v_lshl_add_u32 v5, v3, 3, v5")
    A(f"v_add_u32 v8, {KVR}, v5")
    x_read_addrs(A, 46)
    A("s_waitcnt lgkmcnt(0)")
    make_srd(A, 8, 32, WS_USED)
    l1, l2 = A.label("kvv"), A.label("kvj")
    A("s_cmp_eq_u32 s60, 2")
    A(f"s_cbranch_scc1 {l1}")
    make_srd(A, 48, 20, 16384)
    A(f"s_branch {l2}")
    A(f"{l1}:")
    make_srd(A, 48, 22, 16384)
    A(f"{l2}:")
    for k in range(16):
        if k % 4 == 0:
            A(f"s_mov_b32 m0, {KVR + k*1024}")
            A(f"s_mov_b32 s42, {k*1024}")
        A(f"buffer_load_dwordx4 v2, s[48:51], s42 offen offset:{(k % 4)*1024} lds")
    wq_dma(A)
    A("s_waitcnt vmcnt(16)")
    stamp(A, 2)
    for ks in range(16):
        off = (64*(ks >> 1) + 8*(ks & 1))*32
        A(f"ds_read_b64_tr_b16 {vr(WKV+4*ks,2)}, v8 offset:{off}")
        A(f"ds_read_b64_tr_b16 {vr(WKV+4*ks+2,2)}, v8 offset:{off+128}")
    A("s_lshr_b32 s42, s6, 1")
    A("s_lshl_b32 s42, s42, 7")
    A(f"s_add_u32 s61, s42, {STL}")
    A("v_lshlrev_b32 v7, 3, v3")
    A("v_add_u32 v7, s61, v7")
    A("s_waitcnt lgkmcnt(0)")
    L.kv_mfmas(A, CSK, lambda ks: vr(ONES, 4), WKV)
    A("s_waitcnt vmcnt(0)")
    stamp(A, 4)
    A("s_barrier")
    x_reads(A, lg)
    A(f"ds_read_b64 {vr(STT2,2)}, v7")
    A("s_waitcnt lgkmcnt(0)")
    L.kv_mfmas(A, AKV, lambda ks: vr(BX+4*ks, 4), WKV)
    lnk, lfin = A.label("nokvf"), A.label("kvfin")
    A("s_cmp_lg_u32 s43, 0")
    A(f"s_cbranch_scc1 {lnk}")
    A("s_lshl_b32 s45, s6, 14")
    for ks in range(16):
        if ks % 4 == 0:
            A(f"s_add_u32 s42, s45, {WKVF + ks*1024}")
        A(f"buffer_store_dwordx4 {vr(WKV+4*ks,4)}, v2, s[8:11], s42 offen offset:{(ks%4)*1024}")
    A("s_lshl_b32 s42, s6, 10")
    A(f"s_add_u32 s42, s42, {CSB + 2048}")
    A(f"buffer_store_dwordx4 {vr(CSK,4)}, v2, s[8:11], s42 offen")
    A(f"{lnk}:")
    A(f"s_mov_b32 s58, {KV1}")
    A("s_nop 4")
    L.kv_epilogue(A, AKV, CSK, STT2, ONES, lfin, STL + 512)
    A(f"{lfin}:")
    stamp(A, 6)
    stamp_flush(A)
    A("s_endpgm")
    A(f"{lw}:")
    A("s_getpc_b64 s[52:53]")
    A("L_pcref:")
    A(f"s_sub_u32 s52, s52, L_pcref-{name}")
    A("s_subb_u32 s53, s53, 0")
    A("v_subrev_u32 v8, 320, v0")
    A("v_lshlrev_b32 v8, 7, v8")
    A("global_load_dword v183, v8, s[52:53]")
    A("s_waitcnt lgkmcnt(0)")
    wq_dma(A)
    A("s_sub_u32 s45, s3, 5")
    A("s_lshl_b32 s6, s2, 1")
    A("s_add_u32 s6, s6, s45")
    A("s_lshl_b32 s45, s45, 13")
    A(f"s_add_u32 s45, s45, {JOBL}")
    make_srd(A, 8, 32, WS_USED)
    stamp(A, 1)
    lidle = A.label("idle")
    A("s_cmp_eq_u32 s3, 7")
    A(f"s_cbranch_scc1 {lidle}")
    l1, l2, l3 = A.label("jwo"), A.label("jw1"), A.label("jw2")
    A("s_cmp_ge_u32 s6, 64")
    A(f"s_cbranch_scc1 {l1}")
    weight_job(A, "wq")
    A(f"{l1}:")
    A("s_sub_u32 s6, s6, 64")
    A("s_cmp_ge_u32 s6, 64")
    A(f"s_cbranch_scc1 {l2}")
    weight_job(A, "wo")
    A(f"{l2}:")
    A("s_sub_u32 s6, s6, 64")
    A("s_cmp_ge_u32 s6, 176")
    A(f"s_cbranch_scc1 {l3}")
    weight_job(A, "w1")
    A(f"{l3}:")
    A("s_sub_u32 s6, s6, 176")
    A("s_cmp_ge_u32 s6, 172")
    A(f"s_cbranch_scc1 {lidle}")
    weight_job(A, "w2")
    A(f"{lidle}:")
    A("s_waitcnt vmcnt(0)")
    A("s_barrier")
    A(f"{lend}:")
    A("s_endpgm")
```

```python
import sys
from common import *
import prep, layer

def build():
    ref = open(f"cdna_kernels/{NAME}.s.ref").read().split("\n")
    head = [l for l in ref if l.startswith(";") and "@launch" not in l and "Override launch" not in l and "grid=ceil" not in l]
    launches = [
        ("front_kernel", 256, 512, prep.FRONT_LDS),
        ("layer1_kernel", 256, 256, layer.LAYER_LDS),
        ("layer2_kernel", 256, 256, layer.LAYER_LDS),
    ]
    out = "\n".join(head) + "\n"
    for k, g, b, l in launches:
        out += f"; @launch kernel={k} grid=({g},1,1) block=({b},1,1) lds={l}\n"
    A = Asm()
    A('.amdgcn_target "amdgcn-amd-amdhsa--gfx950"')
    A(".text")
    prep.gen_front(A, "front_kernel")
    layer.gen_layer(A)
    A("L_code_end:")
    out += A.text()
    out += '.section .rodata,"a"\n'
    for k, nv, acc in (("front_kernel", 184, 184), ("layer1_kernel", 512, 256), ("layer2_kernel", 512, 256)):
        out += ".p2align 6\n" + descriptor(k, nv, acc, 102 if STAMPS else 64)
    return out

if __name__ == "__main__":
    dst = sys.argv[1] if len(sys.argv) > 1 else f"cdna_kernels/{NAME}.s"
    open(dst, "w").write(build())
    print("wrote", dst)
```

```python
NAME = "interleave_layers__grouped_kv_mqa__dense_activation_silu__prompt"

WQF  = 0x000000
WOF  = 0x080000
W1F  = 0x100000
W2F  = 0x260000
KV1  = 0x3C0000
VOFF = 0x10000
VBLK = 272
KVF  = 0xDC0000
WFL  = 0x3E8000
FLG  = 0x3F0000
XF   = 0x600000
HX   = 0x800000
KV2  = 0xD60000
STF  = 0xD90000
WS_USED = 0xE00000

QSCALE = 0.25 * 1.4426950408889634

import struct
def f32bits(x):
    return struct.unpack("<I", struct.pack("<f", x))[0]

class Asm:
    def __init__(self):
        self.lines = []
        self.uid = 0
    def __call__(self, s):
        for ln in s.split("\n"):
            ln = ln.strip()
            if not ln:
                continue
            if ln.endswith(":") or ln.startswith(".") :
                self.lines.append(ln)
            else:
                self.lines.append("    " + ln)
    def c(self, s):
        self.lines.append("    ; " + s)
    def label(self, base):
        self.uid += 1
        return f"L_{base}_{self.uid}"
    def text(self):
        return "\n".join(self.lines) + "\n"

def vr(b, n=1):
    return f"v{b}" if n == 1 else f"v[{b}:{b+n-1}]"
def ar(b, n=1):
    return f"a{b}" if n == 1 else f"a[{b}:{b+n-1}]"
def sr(b, n=1):
    return f"s{b}" if n == 1 else f"s[{b}:{b+n-1}]"

def kernel_begin(A, name):
    A(f".globl {name}")
    A(".p2align 8")
    A(f".type {name},@function")
    A(f"{name}:")

def descriptor(name, nvgpr, accum, nsgpr=96):
    return f""".amdhsa_kernel {name}
  .amdhsa_next_free_vgpr {nvgpr}
  .amdhsa_next_free_sgpr {nsgpr}
  .amdhsa_accum_offset {accum}
  .amdhsa_group_segment_fixed_size 0
  .amdhsa_kernarg_size 88
  .amdhsa_user_sgpr_count 2
  .amdhsa_user_sgpr_kernarg_segment_ptr 1
  .amdhsa_system_sgpr_workgroup_id_x 1
.end_amdhsa_kernel
"""

def make_srd(A, d, p, nbytes, add=None):
    if add is None:
        A(f"s_mov_b32 s{d}, s{p}")
        A(f"s_and_b32 s{d+1}, s{p+1}, 0xffff")
    else:
        A(f"s_add_u32 s{d}, s{p}, {add}")
        A(f"s_addc_u32 s{d+1}, s{p+1}, 0")
        A(f"s_and_b32 s{d+1}, s{d+1}, 0xffff")
    A(f"s_mov_b32 s{d+2}, {nbytes}")
    A(f"s_mov_b32 s{d+3}, 0x20000")

def wave_sum(A, v, sdst):
    for mod in ("quad_perm:[1,0,3,2] row_mask:0xf", "quad_perm:[2,3,0,1] row_mask:0xf",
                "row_half_mirror row_mask:0xf", "row_mirror row_mask:0xf",
                "row_bcast:15 row_mask:0xa", "row_bcast:31 row_mask:0xc"):
        A("s_nop 1")
        A(f"v_add_f32_dpp v{v}, v{v}, v{v} {mod} bank_mask:0xf")
    A("s_nop 0")
    A(f"v_readlane_b32 s{sdst}, v{v}, 63")

def unpack8(A, dst, src):
    for i in range(4):
        A(f"v_lshlrev_b32 v{dst+2*i}, 16, v{src+i}")
        A(f"v_and_b32 v{dst+2*i+1}, 0xffff0000, v{src+i}")

def layernorm8(A, x, t, pk, s0):
    A(f"v_add_f32 v{t}, v{x}, v{x+1}")
    for i in range(2, 8):
        A(f"v_add_f32 v{t}, v{t}, v{x+i}")
    wave_sum(A, t, s0)
    A("s_nop 1")
    A(f"v_mov_b32 v{t}, s{s0}")
    A(f"v_mul_f32 v{t}, {f32bits(-1.0/512.0):#x}, v{t}")
    for i in range(8):
        A(f"v_add_f32 v{x+i}, v{x+i}, v{t}")
    A(f"v_mul_f32 v{t}, v{x}, v{x}")
    for i in range(1, 8):
        A(f"v_fmac_f32 v{t}, v{x+i}, v{x+i}")
    wave_sum(A, t, s0)
    A(f"s_mov_b32 s{s0+1}, {f32bits(1.0/512.0):#x}")
    A(f"v_mov_b32 v{t}, {f32bits(1e-5):#x}")
    A(f"v_mov_b32 v{pk}, s{s0}")
    A(f"v_fmac_f32 v{t}, s{s0+1}, v{pk}")
    A(f"v_rsq_f32 v{t}, v{t}")
    A("s_nop 0")
    for i in range(8):
        A(f"v_mul_f32 v{x+i}, v{x+i}, v{t}")
    for i in range(4):
        A(f"v_cvt_pk_bf16_f32 v{pk+i}, v{x+2*i}, v{x+2*i+1}")

import os
STAMPS = bool(os.environ.get("STAMPS"))
STAMP_OFF = 0x1200000
if STAMPS and not os.environ.get('DBGOUT'):
    WS_USED = 0x1200000 + 0x400000
NSTAMP = 12
SB0 = 72
def stamp_init(A):
    if not STAMPS: return
    A(f"s_memrealtime s[{SB0}:{SB0+1}]")
    A("s_memtime s[96:97]")
    for k in range(1, NSTAMP):
        A(f"s_mov_b32 s{SB0+2*k}, 0")
    A("s_mov_b32 s98, 0")
    A("s_mov_b32 s100, 0")
STAMP_NAMES = os.environ.get("STAMPS", "").split(",")
CSPAN = os.environ.get("CSPAN", "").split(",")
def stamp(A, k):
    if not STAMPS: return
    if k in CSPAN:
        A(f"s_memtime s[{98+2*CSPAN.index(k)}:{99+2*CSPAN.index(k)}]")
    if k not in STAMP_NAMES: return
    k = STAMP_NAMES.index(k) + 1
    assert k < NSTAMP - 1
    A(f"s_memrealtime s[{SB0+2*k}:{SB0+2*k+1}]")
DBGOUT = bool(os.environ.get("DBGOUT"))
def stamp_flush(A, slot, va=48):
    if not STAMPS: return
    if DBGOUT:
        if slot == 0: return
        l = A.label("nodbg")
        A(f"s_memrealtime s[{SB0+2*(NSTAMP-1)}:{SB0+2*(NSTAMP-1)+1}]")
        A("s_memtime s[42:43]")
        A("s_load_dwordx2 s[66:67], s[0:1], 72")
        A("s_waitcnt lgkmcnt(0)")
        A("s_sub_u32 s42, s42, s96")
        A("s_add_u32 s48, s2, s3")
        A("s_cmp_lg_u32 s48, 0")
        A(f"s_cbranch_scc1 {l}")
        A("s_mov_b64 exec, 1")
        A(f"v_mov_b32 v{va}, 0")
        for k in range(1, NSTAMP+1):
            if k < NSTAMP:
                A(f"s_sub_u32 s48, s{SB0+2*k}, s{SB0}")
            else:
                A("s_mov_b32 s48, s42")
            A(f"v_mov_b32 v{va+1}, s48")
            A(f"global_store_dword v{va}, v{va+1}, s[66:67] offset:{4+4*k}")
        A(f"{l}:")
        return
    A(f"s_memrealtime s[{SB0+2*(NSTAMP-1)}:{SB0+2*(NSTAMP-1)+1}]")
    A("s_memtime s[42:43]")
    A("s_waitcnt lgkmcnt(0)")
    A("s_sub_u32 s42, s42, s96")
    A("s_sub_u32 s43, s100, s98")
    A("s_mov_b64 exec, 1")
    A(f"s_add_u32 s48, s2, {slot*512}")
    A("s_lshl_b32 s48, s48, 3")
    A("s_add_u32 s48, s48, s3")
    A("s_lshl_b32 s48, s48, 6")
    A(f"s_add_u32 s48, s48, {STAMP_OFF}")
    A(f"v_mov_b32 v{va}, 0")
    for k in range(NSTAMP+2):
        src = SB0+2*k if k < NSTAMP else 42 + (k - NSTAMP)
        A(f"v_mov_b32 v{va+1}, s{src}")
        A(f"buffer_store_dword v{va+1}, v{va}, s[8:11], s48 offen offset:{4*k}")
    A("s_mov_b64 exec, -1")

def ln_multi(A, rows, s0):
    n = len(rows)
    def wsum():
        for mod in ("quad_perm:[1,0,3,2] row_mask:0xf", "quad_perm:[2,3,0,1] row_mask:0xf",
                    "row_half_mirror row_mask:0xf", "row_mirror row_mask:0xf",
                    "row_bcast:15 row_mask:0xa", "row_bcast:31 row_mask:0xc"):
            if n < 3:
                A(f"s_nop {2-n}")
            for x, t, pk in rows:
                A(f"v_add_f32_dpp v{t}, v{t}, v{t} {mod} bank_mask:0xf")
        if n < 2:
            A("s_nop 0")
        for i, (x, t, pk) in enumerate(rows):
            if i == n-1 and n == 2:
                pass
            A(f"v_readlane_b32 s{s0+i}, v{t}, 63")
    for x, t, pk in rows:
        A(f"v_add_f32 v{t}, v{x}, v{x+1}")
    for i in range(2, 8):
        for x, t, pk in rows:
            A(f"v_add_f32 v{t}, v{t}, v{x+i}")
    wsum()
    A(f"s_mov_b32 s{s0+n}, {f32bits(-1.0/512.0):#x}")
    A("s_nop 0")
    for i, (x, t, pk) in enumerate(rows):
        A(f"v_mov_b32 v{t}, s{s0+i}")
    for i in range(8):
        for x, t, pk in rows:
            A(f"v_fmac_f32 v{x+i}, s{s0+n}, v{t}")
    for x, t, pk in rows:
        A(f"v_mul_f32 v{t}, v{x}, v{x}")
    for i in range(1, 8):
        for x, t, pk in rows:
            A(f"v_fmac_f32 v{t}, v{x+i}, v{x+i}")
    wsum()
    A(f"s_mov_b32 s{s0+n}, {f32bits(1.0/512.0):#x}")
    for x, t, pk in rows:
        A(f"v_mov_b32 v{t}, {f32bits(1e-5):#x}")
    for i, (x, t, pk) in enumerate(rows):
        A(f"v_mov_b32 v{pk}, s{s0+i}")
    for x, t, pk in rows:
        A(f"v_fmac_f32 v{t}, s{s0+n}, v{pk}")
    for x, t, pk in rows:
        A(f"v_rsq_f32 v{t}, v{t}")
    A("s_nop 0")
    for i in range(8):
        for x, t, pk in rows:
            A(f"v_mul_f32 v{x+i}, v{x+i}, v{t}")
    for i in range(4):
        for x, t, pk in rows:
            A(f"v_cvt_pk_bf16_f32 v{pk+i}, v{x+2*i}, v{x+2*i+1}")

class Cnt:
    def __init__(self, A, name, mx):
        self.A, self.name, self.mx = A, name, mx
        self.tags = []; self.done = 0
    def issue(self, tag):
        self.tags.append(tag)
        assert len(self.tags) - self.done <= (self.mx if self.name == "vmcnt" else 10**9), f"{self.name} overflow"
    def need(self, tag):
        idx = max(i for i, t in enumerate(self.tags) if t == tag)
        if idx < self.done:
            return
        n = min(len(self.tags) - 1 - idx, self.mx)
        self.A(f"s_waitcnt {self.name}({n})")
        self.done = len(self.tags) - n
    def all(self, force=False):
        if force or self.done < len(self.tags):
            self.A(f"s_waitcnt {self.name}(0)")
            self.done = len(self.tags)
    def mark_all_done(self):
        self.done = len(self.tags)
```

```python
from common import *
import os
FORCE_SLOW = bool(os.environ.get('ATT_FORCE_SLOW'))
FORCE_XMODE = bool(os.environ.get('FORCE_XMODE'))

PB = 0
PB_T = 2048
PB_S = 8*PB_T
XS = 0
XL = 0
RB = 0
LB = 65536
WL = LB + 4096
QL = WL + 65536
KVR = QL + 8192
MISC = KVR + 16384
FLAG = 0
STL = 64
STV = 576
CSQL = 768
CSKL = 1024
MX = 2048
LDS_BYTES = MISC + 3072

V_T, V_FL, V_NRD, V_IPV, V_Z, V_CHK, V_K, V_V, V_FL2, V_NON, V_WL, V_L8 = 0, 3, 4, 5, 6, 8, 9, 10, 11, 12, 14, 15
V_RS = V_CHK
V_MISC = V_FL
V_P = 48
QF = 16
S = [48, 64]
OA = [80, 96]
XT = 112
KF, VF = 0, 64

L_LO = f32bits(2.0**-30)
L_HI = f32bits(2.0**40)
POLL_MAX = 100000

def R(reg, n):
    return vr(reg[1], n) if reg[0] == 'v' else ar(reg[1], n)

W1R = [('v', 120+4*k) for k in range(34)] + [('a', 192+4*k) for k in range(14)]
_ret = []
for _s in range(16):
    _ret += [('a', KF+4*_s), ('a', VF+8*_s), ('a', VF+8*_s+4)]
W2R = _ret[:44]
BR = [('v', 16+4*k) for k in range(12)] + _ret[44:]
BO = [('v', 32+4*k) for k in range(8)] + _ret[42:] + [('a', 248), ('a', 252)]
ARING, ACC16 = 64, 96

def qk(A, dst, s, T, c="0"):
    A(f"v_mfma_f32_32x32x16_bf16 {vr(dst,16)}, {ar(KF+4*s,4)}, {vr(QF+4*T,4)}, {c}")
def smf_pv(A, oa, g, sreg):
    A(f"v_smfmac_f32_32x32x32_bf16 {vr(oa,16)}, {ar(VF+4*g,4)}, {vr(sreg,8)}, v{V_IPV}")
def zero16(A, d):
    A(f"v_mfma_f32_32x32x8_bf16 {vr(d,16)}, {vr(V_Z,2)}, {vr(V_Z,2)}, 0")
def pkadd(A, d, a, b):
    A(f"v_pk_add_f32 {vr(d,2)}, {vr(a,2)}, {vr(b,2)}")
def mfma16(A, d, a, b, first):
    A(f"v_mfma_f32_16x16x32_bf16 {vr(d,4)}, {a}, {b}, {'0' if first else vr(d,4)}")

def emit_flush(A, oa, k, T):
    if k < 2:
        A(f"ds_write_b128 v{V_FL}, {vr(oa+4*k,4)} offset:{T*PB_T + k*1024}")
    else:
        A("s_mov_b32 exec_hi, 0")
        A(f"ds_write_b32 v{V_FL2}, v{oa+8} offset:{T*128}")
        A("s_mov_b32 exec_hi, -1")

def kv_loads(A, vm, s, st):
    kb = (s >> 2)*4096
    if st.get("k") != kb:
        A(f"s_add_u32 s60, s46, {kb}"); st["k"] = kb
    A(f"buffer_load_dwordx4 {ar(KF+4*s,4)}, v2, s[8:11], s60 offen offset:{(s & 3)*1024} sc1")
    if vm: vm.issue(("k", s))
    vb = (s // 3)*3*4*VBLK
    if st.get("v") != vb:
        A(f"s_add_u32 s61, s47, {vb}"); st["v"] = vb
    for h in range(2):
        A(f"buffer_load_dwordx4 {ar(VF+4*(2*s+h),4)}, v{V_V}, s[8:11], s61 offen offset:{(s % 3)*4*VBLK + h*2*VBLK} sc1")
        if vm: vm.issue(("v", 2*s+h))

def q_reads(A):
    A(f"v_add_u32 v{V_T}, {QL}, v2")
    for T in range(8):
        A(f"ds_read_b128 {vr(QF+4*T,4)}, v{V_T} offset:{T*1024}")

def rot_group(A, g, dst):
    A(f"s_mov_b32 s{dst}, {g*4096}")

def w1_bases(A, g):
    rot_group(A, g, 61)
    A("s_add_u32 s51, s62, s61")
    A("s_add_u32 s60, s51, 16384")
    A("s_add_u32 s61, s63, s61")

W1NT = os.environ.get("W1NT", "")
def w1_load(A, vm, f):
    ks, mt = f // 3, f % 3
    A(f"buffer_load_dwordx4 {R(W1R[f],4)}, v2, s[16:19], s{(51, 60, 61)[mt]} offen offset:{(ks & 3)*1024} sc1 {W1NT}")
    if vm: vm.issue(("w1", f))

def w2_load(A, vm, n):
    if n % 4 == 0:
        A(f"s_add_u32 s50, s55, {n*1024}")
    A(f"buffer_load_dwordx4 {R(W2R[n],4)}, v2, s[20:23], s50 offen offset:{(n % 4)*1024} sc1")
    if vm: vm.issue(("w2", n))

def wl_dma(A, vm, k, sbase, srd=8):
    if k % 4 == 0:
        rot_group(A, k >> 2, 49)
        A("s_add_u32 m0, s45, s49")
        A(f"s_add_u32 s49, s{sbase}, s49")
    A(f"buffer_load_dwordx4 v2, s[{srd}:{srd+3}], s49 offen offset:{(k % 4)*1024} sc1 lds")
    if vm: vm.issue(("wl", k))

def publish(A, k, sown):
    lf, ld = A.label("pf"), A.label("pd")
    A(f"s_add_u32 s48, s{sown}, {k*8192}")
    A("s_waitcnt vmcnt(0)")
    A("s_cmp_eq_u32 s56, 0")
    A(f"s_cbranch_scc1 {lf}")
    A("buffer_wbl2 sc1")
    A("s_waitcnt vmcnt(0)")
    A("s_mov_b64 exec, 1")
    A(f"buffer_store_dwordx2 {vr(V_NON,2)}, v{V_Z}, s[8:11], s48 offen sc1")
    A(f"s_branch {ld}")
    A(f"{lf}:")
    A("s_mov_b64 exec, 1")
    A(f"buffer_store_dwordx2 {vr(V_NON,2)}, v{V_Z}, s[8:11], s48 offen")
    A(f"{ld}:")
    A("s_mov_b64 exec, -1")

def poll(A, vaddr, lanes8, sleep=0):
    lp, ld = A.label("poll"), A.label("polled")
    A("s_mov_b32 s43, 0")
    if lanes8:
        A("s_mov_b64 exec, 0xff")
    A(f"{lp}:")
    A(f"buffer_load_dwordx2 {vr(V_P,2)}, v{vaddr}, s[8:11], s48 offen sc1")
    A("s_add_u32 s43, s43, 1")
    A("s_waitcnt vmcnt(0)")
    A(f"v_cmp_ne_u64 vcc, s[64:65], {vr(V_P,2)}")
    A(f"s_cmp_ge_u32 s43, {POLL_MAX}")
    A(f"s_cbranch_scc1 {ld}")
    A("s_nop 1")
    if sleep:
        A(f"s_cbranch_vccz {ld}")
        A(f"s_sleep {sleep}")
        A(f"s_branch {lp}")
    else:
        A(f"s_cbranch_vccnz {lp}")
    A(f"{ld}:")
    if lanes8:
        A("s_mov_b64 exec, -1")

def wait_group(A, k):
    A(f"s_add_u32 s48, s57, {k*8192}")
    poll(A, V_L8, True)
    la = A.label("noacq")
    A("s_cmp_eq_u32 s56, 0")
    A(f"s_cbranch_scc1 {la}")
    A("buffer_inv sc1")
    A("s_waitcnt vmcnt(0)")
    A(f"{la}:")

def n_stage(A, check):
    P, L = 16, 88
    for src in range(4):
        A(f"ds_read_b32 v{L+src}, v{V_T} offset:{src*1024}")
    for src in range(4):
        for k in range(4):
            A(f"ds_read_b128 {vr(P+16*src+4*k,4)}, v{V_NRD} offset:{src*PB_S + (k >> 1)*1024 + (k & 1)*512}")
    A("s_waitcnt lgkmcnt(8)")
    A(f"v_add_f32 v{L}, v{L}, v{L+1}")
    A(f"v_add_f32 v{L+2}, v{L+2}, v{L+3}")
    for i in range(0, 16, 2):
        pkadd(A, P+i, P+i, P+16+i)
    A(f"v_add_f32 v{L}, v{L}, v{L+2}")
    A(f"v_rcp_f32 v{L+2}, v{L}")
    A(f"v_subrev_u32 v{V_CHK}, s52, v{L}")
    A("s_waitcnt lgkmcnt(0)")
    for i in range(0, 16, 2):
        pkadd(A, P+32+i, P+32+i, P+48+i)
    for i in range(0, 16, 2):
        pkadd(A, P+i, P+i, P+32+i)
    for i in range(0, 16, 2):
        A(f"v_pk_mul_f32 {vr(P+i,2)}, {vr(P+i,2)}, {vr(L+2,2)} op_sel_hi:[1,0]")
    for i in range(8):
        A(f"v_cvt_pk_bf16_f32 v{80+i}, v{P+2*i}, v{P+2*i+1}")
    A("s_lshl_b32 s48, s3, 10")
    for e in range(2):
        A(f"buffer_store_dwordx4 {vr(80+4*e,4)}, v2, s[24:27], s48 offen")
        A("s_add_u32 s48, s48, 4096")

def l_addr(A):
    A(f"v_lshrrev_b32 v{V_T}, 4, v1")
    A(f"v_lshlrev_b32 v{V_T}, 8, v{V_T}")
    A(f"v_and_b32 v{S[0]}, 15, v1")
    A(f"v_lshl_add_u32 v{V_T}, v{S[0]}, 2, v{V_T}")
    A(f"v_add_u32 v{V_T}, s40, v{V_T}")

def only_layer0(A, fn):
    l = A.label("l0")
    A("s_cmp_lg_u32 s7, 0")
    A(f"s_cbranch_scc1 {l}")
    fn()
    A(f"{l}:")

def gen_attention(A, vm, lg, st):
    zero16(A, OA[0])
    zero16(A, OA[1])
    A("s_waitcnt lgkmcnt(0)")
    vm.need(("k", 0))
    qk(A, S[0], 0, 0)
    A("s_nop 7")
    A("s_nop 3")
    ex = {}
    def at(z, e, fn):
        ex.setdefault((z, e), []).append(fn)
    SB, SQ, SA = 1, 4, 9
    for z in range(12):
        at(z, SB, lambda s=z+4: kv_loads(A, vm, s, st))
    WT = 120
    def wflag():
        A("s_waitcnt vmcnt(0)")
        A("s_lshl_b32 s48, s4, 4")
        A("s_add_u32 s48, s48, s3")
        A("s_lshl_b32 s48, s48, 3")
        A(f"s_add_u32 s48, s48, {WFL}")
        A(f"v_mov_b32 v{WT}, s64")
        A(f"v_mov_b32 v{WT+1}, s71")
        A("s_mov_b64 exec, 1")
        A(f"buffer_store_dwordx2 {vr(WT,2)}, v{V_Z}, s[8:11], s48 offen sc1")
        A("s_mov_b64 exec, -1")
    def wloads():
        A("s_lshl_b32 s48, s3, 13")
        A(f"s_add_u32 s48, s48, {WFL}")
        A(f"v_lshlrev_b32 v{WT+2}, 7, v1")
        for e in range(2):
            A(f"buffer_load_dwordx4 {vr(WT+4+4*e,4)}, v{WT+2}, s[8:11], s48 offen offset:{e*16} sc1")
        A("s_lshl_b32 s48, s5, 10")
        A(f"s_add_u32 s48, s48, {WFL}")
        A(f"v_and_b32 v{WT+2}, 0x3ff, v{WT+2}")
        A(f"buffer_load_dwordx2 {vr(WT+12,2)}, v{WT+2}, s[8:11], s48 offen sc1")
    def wcheck():
        lp, ld = A.label("wchk"), A.label("wok")
        A("s_mov_b32 s43, 0")
        A(f"{lp}:")
        A("s_waitcnt vmcnt(0)")
        for i in range(5):
            A(f"v_xor_b32 v{WT+4+2*i}, s64, v{WT+4+2*i}")
            A(f"v_xor_b32 v{WT+5+2*i}, s71, v{WT+5+2*i}")
        A(f"v_cmp_ne_u32 s[48:49], 0, v{WT+13}")
        A(f"v_or3_b32 v{WT+4}, v{WT+4}, v{WT+6}, v{WT+8}")
        A(f"v_or3_b32 v{WT+5}, v{WT+5}, v{WT+7}, v{WT+9}")
        A(f"v_or3_b32 v{WT+4}, v{WT+4}, v{WT+10}, v{WT+12}")
        A(f"v_or3_b32 v{WT+5}, v{WT+5}, v{WT+11}, v{WT+13}")
        A(f"v_and_b32 v{WT+5}, 0x0fffffff, v{WT+5}")
        A(f"v_or_b32 v{WT+4}, v{WT+4}, v{WT+5}")
        A(f"v_cmp_ne_u32 vcc, 0, v{WT+4}")
        A("s_cmp_lg_u64 s[48:49], 0")
        A("s_cselect_b32 s56, 1, %d" % (1 if FORCE_XMODE else 0))
        A("s_add_u32 s43, s43, 1")
        A(f"s_cmp_ge_u32 s43, {POLL_MAX}")
        A(f"s_cbranch_scc1 {ld}")
        A(f"s_cbranch_vccz {ld}")
        A("s_sleep 8")
        wloads()
        A(f"s_branch {lp}")
        A(f"{ld}:")
        A("s_barrier")
    at(16, SA, lambda: only_layer0(A, lambda: job_part(A, 0)))
    at(21, SA, lambda: (vm.all(), only_layer0(A, lambda: job_part(A, 1))))
    at(22, SA, lambda: only_layer0(A, lambda: job_part(A, 2)))
    at(23, SA, lambda: only_layer0(A, lambda: job_part(A, 3)))
    at(29, SA, lambda: only_layer0(A, wflag))
    at(39, SA, lambda: only_layer0(A, wloads))
    at(43, SA, lambda: only_layer0(A, wcheck))
    for k in range(16):
        at(44+k, SA, lambda k=k: wl_dma(A, vm, k, 41))
    for f in range(48):
        if f % 12 == 0:
            at(60+f, SQ, lambda g=f//12: w1_bases(A, g))
        at(60+f, SA, lambda f=f: w1_load(A, vm, f))
    at(80, SQ, lambda: vm.need(("wl", 15)))
    def thin(k):
        if k == 0:
            A(f"v_lshlrev_b32 v{V_K}, 7, v1")
            A("s_mul_i32 s50, s3, 6144")
        if k == 6:
            A(f"s_add_u32 s50, s44, {XF}")
        if k == 8:
            A(f"s_add_u32 s50, s38, {STF}")
        A("s_mov_b64 exec, 0xff")
        A(f"buffer_load_dword v{V_CHK}, v{V_K}, {'s[24:27]' if k < 6 else 's[8:11]'}, s50 offen sc1")
        A("s_mov_b64 exec, -1")
        A("s_add_u32 s50, s50, 1024")
    TZ = [int(x) for x in os.environ.get("TZ", "45,7").split(",")]
    for k in range(9):
        z = TZ[0] + TZ[1]*k
        at(z, SB if z % 16 not in (1, 2, 3) else SQ, lambda k=k: only_layer0(A, lambda: thin(k)))
    def touch(k):
        if k == 0:
            A(f"v_lshlrev_b32 v{V_T}, 7, v1")
            A("s_mul_i32 s48, s3, 6144")
            A("s_mov_b32 exec_hi, 0xffff")
            A(f"buffer_load_dword v{V_CHK}, v{V_T}, s[24:27], s48 offen sc1")
        elif k == 1:
            A(f"s_add_u32 s48, s38, {STF}")
            A("s_mov_b64 exec, 0xff")
            A(f"buffer_load_dword v{V_CHK}, v{V_T}, s[8:11], s48 offen sc1")
        elif k == 2:
            A(f"s_add_u32 s48, s44, {XF}")
            A("s_mov_b64 exec, 0xffff")
            A(f"buffer_load_dword v{V_CHK}, v{V_T}, s[8:11], s48 offen sc1")
        else:
            A(f"v_lshlrev_b32 v{V_T}, 13, v1")
            A("s_mov_b64 exec, 0xf")
            A(f"buffer_load_dword v{V_CHK}, v{V_T}, s[8:11], s57 offen sc1")
        vm.issue(("touch",))
        A("s_mov_b64 exec, -1")
    for k in range(4):
        at(108+k, SA, lambda k=k: touch(k))
    at(100, SQ, lambda: vm.need(("w1", 20)))
    at(113, SQ, lambda: vm.need(("w1", 47)))
    NW2 = 42
    for n in range(NW2):
        at(114 + n//3, [SB, SQ, SA][n % 3], lambda n=n: w2_load(A, vm, n))
    for i in range(1, 8):
        z0 = 16*i
        for k, (dz, pos) in enumerate([(1, SB), (2, SB), (3, SB)]):
            def f(T=i-1, k=k):
                emit_flush(A, OA[T & 1], k, T); lg.issue(("fl", T))
            at(z0+dz, pos, f)
        if i < 7:
            at(z0+6, SB, lambda T=i-1: lg.need(("fl", T)))
            at(z0+6, 13, lambda T=i+1: zero16(A, OA[T & 1]))
    for z in range(128):
        i, s = z >> 4, z & 15
        cur, oth = S[z & 1], S[(z+1) & 1]
        A.c(f"step {i}.{s}")
        if z in (0, 16):
            stamp(A, {0: "loop0", 16: "loop16"}[z])
        if z in (32, 96):
            stamp(A, f"loop{z}")
        for e in range(16):
            A(f"v_exp_f32 v{cur+e}, v{cur+e}")
            if e == SB and z > 0:
                pz = z-1
                vm.need(("v", 2*(pz & 15)+1))
                smf_pv(A, OA[(pz >> 4) & 1], 2*(pz & 15)+1, oth+8)
            if e == SQ and z < 127:
                vm.need(("k", (z+1) & 15))
                qk(A, oth, (z+1) & 15, (z+1) >> 4)
            if e == SA:
                vm.need(("v", 2*s))
                smf_pv(A, OA[i & 1], 2*s, cur)
            for fn in ex.get((z, e), []):
                fn()
    stamp(A, "loopend")
    A("s_nop 1")
    smf_pv(A, OA[1], 31, S[1]+8)
    l_addr(A)
    A("s_nop 6")
    for k in range(3):
        emit_flush(A, OA[1], k, 7)
    A("s_waitcnt lgkmcnt(0)")
    lg.mark_all_done()
    A("s_barrier")
    stamp(A, "bar1")
    n_stage(A, True)
    stamp(A, "nst")
    A(f"v_mov_b32 v{V_MISC}, {MISC}")
    A(f"v_cmp_lt_u32 vcc, s54, v{V_CHK}")
    A("s_nop 4")
    lab = A.label("noflag")
    if not FORCE_SLOW:
        A(f"s_cbranch_vccz {lab}")
    A(f"ds_write_b32 v{V_MISC}, v{V_NON} offset:{FLAG}")
    A(f"{lab}:")
    return NW2

def gen_slow(A, l_slow, l_back, NW2):
    A(f"{l_slow}:")
    A("s_waitcnt vmcnt(0)")
    st = {}
    for s in range(16):
        kv_loads(A, None, s, st)
    q_reads(A)
    VM = V_CHK
    A(f"v_lshlrev_b32 v{VM}, 2, v1")
    A("s_lshl_b32 s48, s3, 8")
    A(f"s_add_u32 s48, s48, {MISC + MX}")
    A(f"v_add_u32 v{VM}, s48, v{VM}")
    A(f"v_mov_b32 v{S[0]}, 0xff800000")
    A(f"ds_write_b32 v{VM}, v{S[0]}")
    A("s_waitcnt vmcnt(0) lgkmcnt(0)")
    A("s_barrier")
    A(f"v_and_b32 v{VM}, 31, v1")
    A(f"v_lshlrev_b32 v{VM}, 2, v{VM}")
    A(f"v_add_u32 v{VM}, {MISC + MX}, v{VM}")
    M = OA[1]
    def rot_q():
        for r in range(4):
            A(f"v_mov_b32 v{M+1+r}, v{QF+r}")
        for r in range(28):
            A(f"v_mov_b32 v{QF+r}, v{QF+4+r}")
        for r in range(4):
            A(f"v_mov_b32 v{QF+28+r}, v{M+1+r}")
    A("s_mov_b32 s42, 0")
    l1 = A.label("p1")
    A(f"{l1}:")
    A(f"v_mov_b32 v{M}, 0xff800000")
    A("s_nop 1")
    for s in range(16):
        qk(A, S[0], s, 0)
        A("s_nop 7"); A("s_nop 4")
        for e in range(0, 16, 2):
            A(f"v_max3_f32 v{M}, v{S[0]+e}, v{S[0]+e+1}, v{M}")
    A(f"ds_max_f32 v{VM}, v{M}")
    A(f"v_add_u32 v{VM}, 128, v{VM}")
    rot_q()
    A("s_waitcnt lgkmcnt(0)")
    A("s_add_u32 s42, s42, 1")
    A("s_cmp_lt_u32 s42, 8")
    A(f"s_cbranch_scc1 {l1}")
    A("s_barrier")
    A(f"v_subrev_u32 v{VM}, 1024, v{VM}")
    A(f"s_mul_i32 s48, s3, {PB_S}")
    A(f"v_add_u32 v{V_FL}, s48, v2")
    A("s_mov_b32 s42, 0")
    l2 = A.label("p2")
    A(f"{l2}:")
    A(f"ds_read_b32 v{M}, v{VM}")
    A("s_waitcnt lgkmcnt(0)")
    for e in range(16):
        A(f"v_sub_f32 v{S[1]+e}, 0, v{M}")
    for e in range(16):
        A(f"v_mov_b32 v{OA[0]+e}, 0")
    A("s_nop 1")
    for s in range(16):
        qk(A, S[0], s, 0, vr(S[1], 16))
        A("s_nop 7"); A("s_nop 4")
        for e in range(16):
            A(f"v_exp_f32 v{S[0]+e}, v{S[0]+e}")
        A("s_nop 1")
        smf_pv(A, OA[0], 2*s, S[0])
        smf_pv(A, OA[0], 2*s+1, S[0]+8)
    A("s_nop 7"); A("s_nop 4")
    for k in range(3):
        emit_flush(A, OA[0], k, 0)
    A(f"v_add_u32 v{VM}, 128, v{VM}")
    rot_q()
    A("s_waitcnt lgkmcnt(0)")
    A(f"v_add_u32 v{V_FL}, {PB_T}, v{V_FL}")
    A(f"v_add_u32 v{V_FL2}, 128, v{V_FL2}")
    A("s_add_u32 s42, s42, 1")
    A("s_cmp_lt_u32 s42, 8")
    A(f"s_cbranch_scc1 {l2}")
    l_addr(A)
    A("s_barrier")
    n_stage(A, False)
    A(f"v_mov_b32 v{V_MISC}, {MISC}")
    for n in range(NW2):
        w2_load(A, None, n)
    A("s_barrier")
    A(f"s_branch {l_back}")

def aread(A, lg, n, tag, ring=ARING):
    A(f"ds_read_b128 {vr(ring+4*(n % 8),4)}, v{V_WL} offset:{n*1024}"); lg.issue((tag, n))

def gemm64_core(A, vm, lg, breg, acc, extra, waitb, tag="a", pre=True, init=True, bload=None, ahead=8, ring=ARING):
    if pre:
        for n in range(8):
            aread(A, lg, n, tag, ring)
    if waitb:
        vm.need(("b", 0))
    lg.need((tag, 0))
    for ks in range(16):
        for c in range(4):
            n = ks*4 + c
            mfma16(A, acc+4*c, vr(ring+4*(n % 8), 4), breg(ks), init and ks == 0)
            if n + 8 < 64:
                aread(A, lg, n+8, tag, ring)
            if c == 1 and bload and ks + ahead < 16:
                bload(ks + ahead)
            if c == 3 and waitb and ks < 15:
                vm.need(("b", ks+1))
            if n < 63:
                lg.need((tag, n+1))

def kv_kind(A):
    A("s_and_b32 s42, s6, 1")
    A("s_add_u32 s42, s42, 1")
    A("s_lshr_b32 s48, s6, 1")
    A("s_cmp_eq_u32 s48, s3")
    A("s_cselect_b32 s60, s42, 0")

def kv_mfmas(A, dst, breg, WKV):
    lv, ld = A.label("kvv"), A.label("kvd")
    A("s_cmp_eq_u32 s60, 0")
    A(f"s_cbranch_scc1 {ld}")
    A("s_cmp_eq_u32 s60, 2")
    A(f"s_cbranch_scc1 {lv}")
    for ks in range(16):
        mfma16(A, dst, vr(WKV+4*ks, 4), breg(ks), ks == 0)
    A(f"s_branch {ld}")
    A(f"{lv}:")
    for ks in range(16):
        mfma16(A, dst, breg(ks), vr(WKV+4*ks, 4), ks == 0)
    A(f"{ld}:")

def stats_store(A, x, t, dst):
    for i in range(0, 8, 2):
        pkadd(A, t+i, x+i, x+8+i)
    A(f"v_pk_mul_f32 {vr(t+8,2)}, {vr(x,2)}, {vr(x,2)}")
    pkadd(A, t, t, t+4)
    pkadd(A, t+2, t+2, t+6)
    for i in range(2, 16, 2):
        A(f"v_pk_fma_f32 {vr(t+8,2)}, {vr(x+i,2)}, {vr(x+i,2)}, {vr(t+8,2)}")
    pkadd(A, t, t, t+2)
    A(f"v_add_f32 v{t+8}, v{t+8}, v{t+9}")
    A(f"v_add_f32 v{t}, v{t}, v{t+1}")
    A(f"v_and_b32 v{t+2}, 15, v1")
    A(f"v_lshlrev_b32 v{t+2}, 4, v{t+2}")
    A(f"v_permlane32_swap_b32 v{t}, v{t+8}")
    A(f"v_lshrrev_b32 v{t+3}, 5, v1")
    A(f"v_add_f32 v{t}, v{t}, v{t+8}")
    A(f"v_mov_b32 v{t+8}, v{t}")
    A(f"v_lshl_add_u32 v{t+2}, v{t+3}, 2, v{t+2}")
    A(f"s_add_u32 s48, s38, {dst}")
    A(f"v_permlane16_swap_b32 v{t}, v{t+8}")
    A("s_add_u32 s48, s48, s37")
    A(f"v_add_f32 v{t}, v{t}, v{t+8}")
    A("s_mov_b32 exec_lo, 0xffff")
    A("s_mov_b32 exec_hi, 0xffff")
    A(f"buffer_store_dword v{t}, v{t+2}, s[8:11], s48 offen")
    A("s_mov_b64 exec, -1")

def stats_load(A, vm, t, src, sc="sc1"):
    A(f"s_add_u32 s48, s38, {src}")
    A(f"buffer_load_dwordx4 {vr(t,4)}, v2, s[8:11], s48 offen {sc}"); vm.issue(("stat",))

def stats_ops(t):
    o = [f"v_add_f32 v{t}, v{t}, v{t+2}", f"v_add_f32 v{t+1}, v{t+1}, v{t+3}"]
    for op in ("v_permlane32_swap_b32", "v_permlane16_swap_b32"):
        o += [f"v_mov_b32 v{t+2}, v{t}", f"v_mov_b32 v{t+3}, v{t+1}", "s_nop 0",
              f"{op} v{t}, v{t+2}", f"{op} v{t+1}, v{t+3}",
              f"v_add_f32 v{t}, v{t}, v{t+2}", f"v_add_f32 v{t+1}, v{t+1}, v{t+3}"]
    return o + stats_fin(t)

def stats_fin(t):
    o = []
    o.append(f"v_mul_f32 v{t}, {f32bits(-1.0/512.0):#x}, v{t}")
    o.append(f"v_mul_f32 v{t+1}, {f32bits(1.0/512.0):#x}, v{t+1}")
    o.append(f"v_fma_f32 v{t+1}, -v{t}, v{t}, v{t+1}")
    o.append(f"v_max_f32 v{t+1}, 0, v{t+1}")
    o.append(f"v_add_f32 v{t+1}, {f32bits(1e-5):#x}, v{t+1}")
    o.append(f"v_rsq_f32 v{t+1}, v{t+1}")
    o.append("s_nop 0")
    return o

def kv_epilogue(A, AKV, CSK, STT, ONES, stl):
    lfin = A.label("kvfin")
    A(f"v_and_b32 v{V_K}, 15, v1")
    lvv = A.label("vout")
    A("s_cmp_eq_u32 s60, 2")
    A(f"s_cbranch_scc1 {lvv}")
    A(f"v_mul_f32 v{STT+4}, {f32bits(QSCALE):#x}, v{STT+1}")
    for r in range(4):
        A(f"v_fmac_f32 v{AKV+r}, v{STT}, v{CSK+r}")
    for r in range(4):
        A(f"v_mul_f32 v{AKV+r}, v{STT+4}, v{AKV+r}")
    A(f"v_cvt_pk_bf16_f32 v{AKV+4}, v{AKV}, v{AKV+1}")
    A(f"v_cvt_pk_bf16_f32 v{AKV+5}, v{AKV+2}, v{AKV+3}")
    A(f"v_lshlrev_b32 v{V_K}, 4, v{V_K}")
    A(f"v_lshrrev_b32 v{V_V}, 5, v1")
    A(f"v_lshl_add_u32 v{V_K}, v{V_V}, 9, v{V_K}")
    A(f"v_bfe_u32 v{V_V}, v1, 4, 1")
    A(f"v_lshl_add_u32 v{V_K}, v{V_V}, 3, v{V_K}")
    A("s_lshr_b32 s48, s38, 11")
    A("s_lshl_b32 s48, s48, 10")
    A("s_bfe_u32 s42, s38, 0x1000a")
    A("s_lshl_b32 s42, s42, 8")
    A("s_add_u32 s48, s48, s42")
    A("s_add_u32 s48, s48, s58")
    A(f"buffer_store_dwordx2 {vr(AKV+4,2)}, v{V_K}, s[8:11], s48 offen sc1")
    A(f"s_branch {lfin}")
    A(f"{lvv}:")
    A(f"v_lshlrev_b32 v{V_NRD}, 3, v{V_K}")
    A(f"v_add_u32 v{V_NRD}, {stl}, v{V_NRD}")
    A(f"ds_write_b64 v{V_NRD}, {vr(STT,2)}")
    A(f"v_lshrrev_b32 v{V_V}, 4, v1")
    A(f"v_lshlrev_b32 v{V_NRD}, 5, v{V_V}")
    A(f"v_add_u32 v{V_NRD}, {stl}, v{V_NRD}")
    A("s_waitcnt lgkmcnt(0)")
    A(f"ds_read_b128 {vr(STT+4,4)}, v{V_NRD}")
    A(f"ds_read_b128 {vr(STT+8,4)}, v{V_NRD} offset:16")
    A(f"v_lshlrev_b32 v{V_K}, 4, v{V_K}")
    A(f"v_and_b32 v{V_NRD}, 1, v{V_V}")
    A(f"v_lshl_add_u32 v{V_K}, v{V_NRD}, 3, v{V_K}")
    A(f"v_lshrrev_b32 v{V_V}, 1, v{V_V}")
    A(f"v_mul_u32_u24 v{V_V}, {VBLK}, v{V_V}")
    A(f"v_add_u32 v{V_K}, v{V_K}, v{V_V}")
    A("s_lshr_b32 s48, s38, 9")
    A(f"s_mul_i32 s48, s48, {VBLK}")
    A("s_add_u32 s48, s48, s58")
    A(f"s_add_u32 s48, s48, {VOFF}")
    A("s_waitcnt lgkmcnt(0)")
    for r in range(4):
        A(f"v_fmac_f32 v{AKV+r}, v{STT+4+2*r}, v{CSK+r}")
    for r in range(4):
        A(f"v_mul_f32 v{AKV+r}, v{STT+5+2*r}, v{AKV+r}")
    A(f"v_cvt_pk_bf16_f32 v{AKV+4}, v{AKV}, v{AKV+1}")
    A(f"v_cvt_pk_bf16_f32 v{AKV+5}, v{AKV+2}, v{AKV+3}")
    A(f"buffer_store_dwordx2 {vr(AKV+4,2)}, v{V_K}, s[8:11], s48 offen sc1")
    A("s_mov_b32 exec_lo, 1")
    A("s_mov_b32 exec_hi, 1")
    A(f"buffer_store_dwordx4 {vr(ONES,4)}, v{V_V}, s[8:11], s48 offen offset:256 sc1")
    A("s_mov_b64 exec, -1")
    A(f"{lfin}:")


BX = 16
def x_dma(A, vm):
    for r in range(16):
        A(f"v_xor_b32 v{V_T}, {16*r}, v2")
        if r % 4 == 0:
            A(f"s_add_u32 m0, s45, {XS + r*1024}")
            A(f"s_add_u32 s42, s39, {r*1024}")
        A(f"buffer_load_dwordx4 v{V_T}, s[12:15], s42 offen offset:{(r % 4)*1024} lds"); vm.issue(("x",))

def x_reads(A, lg):
    for ks in range(16):
        p, e = ks >> 1, ks & 1
        A(f"ds_read_b128 {vr(BX+4*ks,4)}, v{80 + 2*(p & 1) + e} offset:{(p >> 1)*256}"); lg.issue(("x", ks))
    A(f"ds_read_b128 {vr(XT,4)}, v85"); lg.issue(("xt",))
    A(f"ds_read_b128 {vr(XT+4,4)}, v86"); lg.issue(("xt",))

def row_stats(A, lg, STT, hook=None):
    for k in range(4):
        A(f"v_mov_b32 v{STT+k}, 0")
    for ks in range(16):
        lg.need(("x", ks))
        for r in range(4):
            o = 2*(r & 1)
            A(f"v_dot2_f32_bf16 v{STT+o}, v{BX+4*ks+r}, s47, v{STT+o}")
            A(f"v_dot2_f32_bf16 v{STT+o+1}, v{BX+4*ks+r}, v{BX+4*ks+r}, v{STT+o+1}")
        if hook: hook(ks)
    A("s_nop 2")
    for op in stats_ops(STT):
        A(op)

JR, JA = 240, 232
JST = 12288
def job_setup(A):
    lgo = A.label("jgo")
    A("s_lshl_b32 s46, s2, 2")
    A("s_add_u32 s46, s46, s3")
    A(f"v_lshrrev_b32 v{JA}, 3, v1")
    A(f"v_and_b32 v{JA+1}, 7, v1")
    A(f"v_lshrrev_b32 v{JA+3}, 2, v3")
    A(f"v_lshlrev_b32 v{JA+4}, 10, v4")
    A(f"v_lshl_add_u32 v{JA+4}, v{JA+3}, 7, v{JA+4}")
    A(f"v_and_b32 v{JA+3}, 3, v3")
    A(f"s_lshl_b32 s42, s3, 14")
    A(f"s_add_u32 s42, s42, {JST}")
    A(f"v_add_u32 v{JA+4}, s42, v{JA+4}")
    lo = 0
    for kind, cnt in (("wq", 128), ("wo", 128), ("w1", 352), ("w2", 344)):
        lnext = A.label("jn")
        ptr = {"wq": 18, "wo": 24, "w1": 28, "w2": 30}[kind]
        nbytes = {"wq": 512*1024, "wo": 512*1024, "w1": 512*2752, "w2": 1376*1024}[kind]
        stride = 2752 if kind == "w1" else 1024
        A(f"s_cmp_ge_u32 s46, {cnt}")
        A(f"s_cbranch_scc1 {lnext}")
        make_srd(A, 12, ptr, nbytes)
        if kind == "w1":
            A("s_and_b32 s41, s46, 15")
            A("s_lshr_b32 s40, s46, 4")
        else:
            A("s_and_b32 s40, s46, 7")
            A("s_lshr_b32 s41, s46, 3")
        if kind == "w2":
            A(f"v_and_b32 v{JA+2}, 3, v{JA}")
            A(f"v_lshrrev_b32 v{JA}, 2, v{JA}")
            A(f"v_lshl_add_u32 v{JA}, v{JA}, 4, v{JA+2}")
            A(f"s_mul_i32 s42, s41, {32*stride}")
            A(f"s_mov_b32 s43, {4*stride}")
        else:
            A("s_lshr_b32 s42, s41, 1")
            A("s_lshl_b32 s42, s42, 3")
            A("s_and_b32 s43, s41, 1")
            A("s_add_u32 s42, s42, s43")
            A(f"s_mul_i32 s42, s42, {8*stride}")
            A(f"s_mov_b32 s43, {16*stride}")
        A(f"v_mul_u32_u24 v{JA}, {stride}, v{JA}")
        if kind == "w1":
            A("s_lshl_b32 s68, s40, 16")
            A("s_lshl_b32 s69, s41, 10")
            A("s_add_u32 s68, s68, s69")
            A(f"s_add_u32 s68, s68, {W1F}")
            A("s_mov_b32 s69, 16384")
            A(f"v_lshl_add_u32 v{JA+4}, v{JA+3}, 3, v{JA+4}")
            A("s_mov_b32 s41, 32")
        else:
            A(f"s_mul_i32 s68, s40, {43 if kind == 'w2' else 16}")
            A("s_add_u32 s68, s68, s41")
            A("s_lshl_b32 s68, s68, 12")
            A(f"s_add_u32 s68, s68, {dict(wq=WQF, wo=WOF, w2=W2F)[kind]}")
            A("s_mov_b32 s69, 1024")
            A(f"v_lshl_add_u32 v{JA+4}, v{JA+3}, 5, v{JA+4}")
            A("s_mov_b32 s41, 8")
        A(f"s_branch {lgo}")
        A(f"{lnext}:")
        A(f"s_sub_u32 s46, s46, {cnt}")
    make_srd(A, 12, 18, 0)
    A(f"s_mov_b32 s68, {WS_USED}")
    A("s_mov_b32 s69, 0")
    A("s_mov_b32 s40, 0"); A("s_mov_b32 s41, 0"); A("s_mov_b32 s42, 0"); A("s_mov_b32 s43, 0")
    A(f"{lgo}:")
    A("s_lshl_b32 s40, s40, 7")
    A("s_add_u32 s66, s42, s40")
    A("s_mov_b32 s67, s43")
    A(f"v_lshl_add_u32 v{JA+5}, v{JA+1}, 4, v{JA}")
    A(f"v_mov_b32 v{JA}, v{JA+4}")
    for t in range(1, 4):
        A(f"v_add_u32 v{JA+t}, s41, v{JA+t-1}")

def job_part(A, k):
    if k == 0:
        for n in range(4):
            A(f"buffer_load_dwordx4 {vr(JR+4*n,4)}, v{JA+5}, s[12:15], s66 offen")
            A("s_add_u32 s66, s66, s67")
        make_srd(A, 12, 32, WS_USED)
    elif k == 1:
        A("s_waitcnt vmcnt(0)")
        for n in range(4):
            A(f"ds_write_b128 v{V_FL}, {vr(JR+4*n,4)} offset:{JST + n*1024}")
    elif k == 2:
        A("s_waitcnt lgkmcnt(0)")
        for t in range(4):
            A(f"ds_read_b64_tr_b16 {vr(JR+4*t,2)}, v{JA+t}")
            A(f"ds_read_b64_tr_b16 {vr(JR+4*t+2,2)}, v{JA+t} offset:512")
    else:
        A("s_waitcnt lgkmcnt(0)")
        for t in range(4):
            A(f"buffer_store_dwordx4 {vr(JR+4*t,4)}, v2, s[8:11], s68 offen sc1")
            A("s_add_u32 s68, s68, s69")

def code_prefetch(A, name, lo, n):
    for k in range(n):
        A(f"v_lshlrev_b32 v{V_T}, 7, v1")
        A(f"s_lshl_b32 s42, s3, 13")
        A(f"s_add_u32 s42, s42, {lo + k*32768}")
        A(f"v_add_u32 v{V_T}, s42, v{V_T}")
        A(f"v_min_u32 v{V_T}, L_code_end-{name}-4, v{V_T}")
        A(f"global_load_dword v87, v{V_T}, s[52:53]")

def nonce_load(A, vm):
    A(f"global_load_dwordx2 {vr(V_NON,2)}, v{V_Z}, s[66:67] sc1")
    if vm: vm.issue(("non",))

def nonce_get(A, vm):
    lp, ld = A.label("np"), A.label("nd")
    A("s_mov_b32 s43, 0")
    vm.need(("non",))
    A(f"{lp}:")
    A("s_add_u32 s43, s43, 1")
    A(f"v_readfirstlane_b32 s64, v{V_NON}")
    A(f"v_readfirstlane_b32 s65, v{V_NON+1}")
    A(f"s_cmp_ge_u32 s43, {POLL_MAX}")
    A(f"s_cbranch_scc1 {ld}")
    A("s_cmp_lg_u32 s64, 0")
    A(f"s_cbranch_scc1 {ld}")
    A("s_sleep 2")
    nonce_load(A, None)
    A("s_waitcnt vmcnt(0)")
    A(f"s_branch {lp}")
    A(f"{ld}:")
    A("s_getreg_b32 s71, hwreg(HW_REG_XCC_ID, 0, 4)")
    A("s_lshl_b32 s71, s71, 28")
    A("s_and_b32 s42, s65, 0x0fffffff")
    A("s_or_b32 s71, s71, s42")

def kv_publish(A, layer):
    A("s_lshl_b32 s48, s4, 7")
    A(f"s_add_u32 s48, s48, {KVF + layer*32768}")
    A("s_waitcnt vmcnt(0)")
    A("s_mov_b64 exec, 1")
    A(f"buffer_store_dwordx2 {vr(V_NON,2)}, v{V_Z}, s[8:11], s48 offen sc1")
    A("s_mov_b64 exec, -1")

def kv_tr_reads(A, WKV, vt):
    A(f"v_lshrrev_b32 v{vt}, 4, v1")
    A(f"v_lshlrev_b32 v{vt}, 9, v{vt}")
    A(f"v_and_b32 v{WKV}, 15, v1")
    A(f"v_lshl_add_u32 v{vt}, v{WKV}, 3, v{vt}")
    A(f"v_add_u32 v{vt}, {KVR}, v{vt}")
    for ks in range(16):
        off = (64*(ks >> 1) + 8*(ks & 1))*32
        A(f"ds_read_b64_tr_b16 {vr(WKV+4*ks,2)}, v{vt} offset:{off}")
        A(f"ds_read_b64_tr_b16 {vr(WKV+4*ks+2,2)}, v{vt} offset:{off+128}")

def gen_front(A, name):
    RING, NR, ONES, ACC, CSQ, STT, SP, VA, AKV, CSK, WKV = 88, 6, 120, 124, 140, 144, 156, 164, 166, 172, 176
    lkv, ljoin = A.label("kvwave"), A.label("join")
    A("s_getpc_b64 s[52:53]")
    A("L_pcref:")
    A(f"s_sub_u32 s52, s52, L_pcref-{name}")
    A("s_subb_u32 s53, s53, 0")
    A("v_and_b32 v3, 15, v1")
    A("v_lshrrev_b32 v4, 4, v1")
    A("s_lshl_b32 s39, s5, 16")
    A("s_lshl_b32 s45, s3, 14")
    A("s_add_u32 s39, s39, s45")
    A("s_lshr_b32 s38, s39, 4")
    A("s_mov_b32 s47, 0x3f803f80")
    kv_kind(A)
    for r in range(4):
        A(f"v_mov_b32 v{ONES+r}, 0x3f803f80")
    A("v_lshlrev_b32 v84, 1, v4")
    A("v_xor_b32 v84, v84, v3")
    A("v_lshlrev_b32 v84, 4, v84")
    A("v_lshl_add_u32 v84, v3, 10, v84")
    A("v_add_u32 v84, s45, v84")
    for k in range(4):
        A(f"v_xor_b32 v{80+k}, {(8*(k >> 1) + (k & 1))*16}, v84")
    A("s_and_b32 s42, s6, 1")
    A("s_lshl_b32 s42, s42, 7")
    A("v_xor_b32 v85, s42, v84")
    A("s_lshr_b32 s42, s6, 1")
    A("s_lshl_b32 s42, s42, 8")
    A("v_add_u32 v85, s42, v85")
    A("v_xor_b32 v86, 16, v85")
    A("v_lshrrev_b32 v5, 2, v3")
    A(f"v_lshlrev_b32 v{VA}, 11, v4")
    A(f"v_lshl_add_u32 v{VA}, v5, 7, v{VA}")
    A("v_and_b32 v9, 3, v3")
    A(f"v_lshl_add_u32 v{VA}, v9, 3, v{VA}")
    A("v_lshrrev_b32 v5, 1, v5")
    A(f"v_lshl_add_u32 v{VA}, v5, 5, v{VA}")
    A("v_and_b32 v5, 1, v4")
    A(f"v_lshl_add_u32 v{VA}, v5, 6, v{VA}")
    A("s_lshl_b32 s42, s3, 5")
    A(f"v_xor_b32 v{VA}, s42, v{VA}")
    A(f"v_add_u32 v{VA}, {WL}, v{VA}")
    A(f"v_lshlrev_b32 v{VA+1}, 3, v3")
    A(f"v_add_u32 v{VA+1}, {MISC + STL}, v{VA+1}")
    A("s_waitcnt lgkmcnt(0)")
    make_srd(A, 8, 32, WS_USED)
    make_srd(A, 12, 16, 2048*1024)
    lnn = A.label("nononce")
    A("s_add_u32 s42, s2, s3")
    A("s_cmp_lg_u32 s42, 0")
    A(f"s_cbranch_scc1 {lnn}")
    A("s_or_b32 s64, s64, 1")
    A(f"v_mov_b32 v{V_NON}, s64")
    A(f"v_mov_b32 v{V_NON+1}, s65")
    A("s_mov_b64 exec, 1")
    A(f"global_store_dwordx2 v{V_Z}, {vr(V_NON,2)}, s[66:67] sc1")
    A("s_mov_b64 exec, -1")
    A(f"{lnn}:")
    stamp(A, "f1")
    A("s_cmp_lg_u32 s60, 0")
    A(f"s_cbranch_scc1 {lkv}")
    vm = Cnt(A, "vmcnt", 63); lg = Cnt(A, "lgkmcnt", 15)
    make_srd(A, 48, 18, 512*1024)
    A("s_lshr_b32 s42, s6, 1")
    A("s_cmp_gt_u32 s3, s42")
    A("s_cselect_b32 s42, 1, 0")
    A("s_sub_u32 s46, s3, s42")
    lt1, lt2 = A.label("tq"), A.label("td")
    A(f"v_lshlrev_b32 v{V_T}, 7, v1")
    A("s_cmp_lg_u32 s46, 2")
    A(f"s_cbranch_scc1 {lt1}")
    A("s_lshl_b32 s42, s4, 13")
    A(f"buffer_load_dword v87, v{V_T}, s[12:15], s42 offen")
    A(f"s_branch {lt2}")
    A(f"{lt1}:")
    A("s_lshr_b32 s42, s2, 3")
    A("s_lshl_b32 s42, s42, 1")
    A("s_add_u32 s42, s42, s46")
    A("s_lshl_b32 s42, s42, 13")
    A(f"buffer_load_dword v87, v{V_T}, s[48:51], s42 offen")
    A(f"{lt2}:")
    x_dma(A, vm)
    A("s_mul_i32 s46, s46, 22")
    A("s_min_u32 s46, s46, 42")
    A("v_lshrrev_b32 v5, 3, v1")
    A("v_and_b32 v9, 2, v5")
    A("v_and_b32 v10, 7, v1")
    A("v_xor_b32 v9, v9, v10")
    A("v_lshlrev_b32 v9, 4, v9")
    A("v_lshl_add_u32 v9, v5, 10, v9")
    A("s_lshl_b32 s42, s46, 5")
    A("s_and_b32 s42, s42, 64")
    A("v_xor_b32 v9, s42, v9")
    A("v_xor_b32 v10, 64, v9")
    A("s_lshl_b32 s40, s46, 13")
    A("s_lshl_b32 s42, s6, 7")
    A("s_add_u32 s40, s40, s42")
    A("s_lshl_b32 s41, s46, 10")
    def wq(n):
        A(f"s_add_u32 m0, s41, {WL + n*1024}")
        A(f"s_add_u32 s42, s40, {n*8192}")
        A(f"buffer_load_dwordx4 v{9 + ((n >> 1) & 1)}, s[48:51], s42 offen lds"); vm.issue(("wq",))
    for n in range(6):
        wq(n)
    vm.need(("x",))
    stamp(A, "f2")
    x_reads(A, lg)
    row_stats(A, lg, STT, hook=lambda ks: wq(6 + ks))
    A("s_lshl_b32 s42, s3, 7")
    A(f"v_add_u32 v5, s42, v{VA+1}")
    A(f"ds_write_b64 v5, {vr(STT,2)}")
    nonce_load(A, vm)
    nonce_get(A, vm)
    A(f"s_branch {ljoin}")
    A(f"{lkv}:")
    vm = Cnt(A, "vmcnt", 63); lg = Cnt(A, "lgkmcnt", 15)
    A("s_setprio 3")
    l1, l2 = A.label("kvv"), A.label("kvj")
    A("s_cmp_eq_u32 s60, 2")
    A(f"s_cbranch_scc1 {l1}")
    make_srd(A, 48, 20, 16384)
    A(f"s_branch {l2}")
    A(f"{l1}:")
    make_srd(A, 48, 22, 16384)
    A(f"{l2}:")
    x_dma(A, vm)
    for k in range(16):
        if k % 4 == 0:
            A(f"s_mov_b32 m0, {KVR + k*1024}")
            A(f"s_mov_b32 s42, {k*1024}")
        A(f"buffer_load_dwordx4 v2, s[48:51], s42 offen offset:{(k % 4)*1024} lds"); vm.issue(("raw",))
    nonce_load(A, vm)
    vm.need(("x",))
    stamp(A, "f2")
    x_reads(A, lg)
    def hook(ks):
        if ks == 11:
            vm.need(("raw",))
            lg.all()
            kv_tr_reads(A, WKV, 5)
    row_stats(A, lg, STT, hook=hook)
    A("s_lshl_b32 s42, s3, 7")
    A(f"v_add_u32 v5, s42, v{VA+1}")
    A("s_waitcnt lgkmcnt(0)")
    A(f"ds_write_b64 v5, {vr(STT,2)}")
    stamp(A, "fa")
    kv_mfmas(A, CSK, lambda ks: vr(ONES, 4), WKV)
    kv_mfmas(A, AKV, lambda ks: vr(BX+4*ks, 4), WKV)
    A(f"s_mov_b32 s58, {KV1}")
    A(f"v_add_u32 v5, {MISC + CSKL}, v2")
    A(f"ds_write_b128 v5, {vr(CSK,4)}")
    A("s_nop 4")
    kv_epilogue(A, AKV, CSK, STT, ONES, MISC + STV)
    A("v_lshrrev_b32 v4, 4, v1")
    vm.issue(("st",))
    nonce_get(A, vm)
    A("s_setprio 0")
    A(f"{ljoin}:")
    stamp(A, "f3")
    job_setup(A)
    for k in range(4):
        A(f"v_subrev_u32 v{80+k}, s45, v{80+k}")
    A("s_waitcnt lgkmcnt(0)")
    stamp(A, "f4")
    A("s_barrier")
    lg = Cnt(A, "lgkmcnt", 15)
    AF = BX
    def ard(ks):
        off = (64*(ks >> 1) + 8*(ks & 1))*128
        A(f"ds_read_b64_tr_b16 {vr(AF+4*ks,2)}, v{VA} offset:{off}"); lg.issue(("a", ks))
        A(f"ds_read_b64_tr_b16 {vr(AF+4*ks+2,2)}, v{VA} offset:{off+512}"); lg.issue(("a", ks))
    def brd(n):
        ks, nt = n >> 2, n & 3
        p, e = ks >> 1, ks & 1
        A(f"ds_read_b128 {vr(RING+4*(n % NR),4)}, v{80 + 2*(p & 1) + e} offset:{nt*16384 + (p >> 1)*256}"); lg.issue(("b", n))
    ard(0)
    for n in range(4): brd(n)
    ard(1)
    for n in range(4, NR): brd(n)
    lnp = A.label("nopub")
    A("s_cmp_eq_u32 s60, 0")
    A(f"s_cbranch_scc1 {lnp}")
    kv_publish(A, 0)
    stamp(A, "fb")
    A(f"{lnp}:")
    A("s_mov_b32 s42, s66")
    A("s_mov_b32 exec_lo, 0x01010101")
    A("s_mov_b32 exec_hi, 0x01010101")
    for n in range(4):
        A(f"buffer_load_dword v87, v{JA+5}, s[12:15], s42 offen")
        A(f"buffer_load_dword v87, v{JA+5}, s[12:15], s42 offen offset:124")
        A("s_add_u32 s42, s42, s67")
    A("s_mov_b64 exec, -1")
    code_prefetch(A, name, 8192, 2)
    for n in range(64):
        ks, nt = n >> 2, n & 3
        if nt == 0:
            lg.need(("a", ks))
            mfma16(A, CSQ, vr(AF+4*ks, 4), vr(ONES, 4), ks == 0)
            if ks + 2 < 16:
                ard(ks+2)
        lg.need(("b", n))
        mfma16(A, ACC+4*nt, vr(AF+4*ks, 4), vr(RING+4*(n % NR), 4), ks == 0)
        if n + NR < 64:
            brd(n + NR)
        elif n + NR < 68:
            A(f"ds_read_b64 {vr(SP+2*(n+NR-64),2)}, v{VA+1} offset:{(n+NR-64)*128}"); lg.issue(("sp",))
    stamp(A, "f5")
    A("v_lshrrev_b32 v5, 1, v4")
    A("v_lshlrev_b32 v5, 9, v5")
    A("v_lshl_add_u32 v5, v3, 4, v5")
    A("v_and_b32 v9, 1, v4")
    A("v_lshl_add_u32 v5, v9, 3, v5")
    A("s_lshl_b32 s42, s3, 11")
    A(f"s_add_u32 s42, s42, {QL}")
    A("v_add_u32 v5, s42, v5")
    A("s_lshl_b32 s42, s3, 6")
    A(f"s_add_u32 s42, s42, {MISC + CSQL}")
    A("v_lshlrev_b32 v9, 4, v4")
    A("v_add_u32 v9, s42, v9")
    A("s_waitcnt lgkmcnt(0)")
    A(f"ds_write_b128 v9, {vr(CSQ,4)}")
    for nt in range(4):
        for r in range(4):
            A(f"v_fmac_f32 v{ACC+4*nt+r}, v{SP+2*nt}, v{CSQ+r}")
        for r in range(4):
            A(f"v_mul_f32 v{ACC+4*nt+r}, v{SP+2*nt+1}, v{ACC+4*nt+r}")
        for h in range(2):
            A(f"v_cvt_pk_bf16_f32 v{RING+2*nt+h}, v{ACC+4*nt+2*h}, v{ACC+4*nt+2*h+1}")
        A(f"ds_write_b64 v5, {vr(RING+2*nt,2)} offset:{(nt >> 1)*1024 + (nt & 1)*256}")

def setup_once(A):
    A("s_lshl_b32 s45, s3, 14")
    A("s_lshl_b32 s41, s6, 16")
    A("s_add_u32 s41, s41, s45")
    A(f"s_add_u32 s36, s41, {WQF}")
    A(f"s_add_u32 s41, s41, {WOF}")
    A("s_lshl_b32 s44, s6, 11")
    A("s_add_u32 s44, s44, s39")
    A(f"s_add_u32 s45, s45, {WL}")
    A("s_lshr_b32 s37, s6, 1")
    A("s_lshl_b32 s37, s37, 8")
    A("s_and_b32 s48, s6, 1")
    A("s_lshl_b32 s48, s48, 3")
    A("s_add_u32 s37, s37, s48")
    A(f"s_mov_b32 s52, {L_LO:#x}")
    A(f"s_mov_b32 s54, {L_HI - L_LO:#x}")
    A(f"s_mov_b32 s58, {KV2}")
    A("s_add_u32 s49, s6, 1")
    A("s_lshr_b32 s49, s49, 1")
    A("s_min_u32 s49, s49, 3")
    A("s_mul_i32 s50, s6, 5")
    A("s_add_u32 s49, s49, s50")
    A("s_add_u32 s51, s6, 2")
    A("s_lshr_b32 s51, s51, 1")
    A("s_min_u32 s51, s51, 3")
    A("s_add_u32 s51, s51, s50")
    A("s_add_u32 s51, s51, 5")
    A("s_sub_u32 s51, s51, s49")
    A("s_lshl_b32 s62, s3, 15")
    A("s_lshl_b32 s63, s3, 14")
    A(f"s_add_u32 s63, s63, {8*16384}")
    A(f"s_mul_i32 s55, s3, {11*4096}")
    A("s_lshl_b32 s48, s49, 15")
    A(f"s_add_u32 s48, s48, {W1F}")
    A("s_lshl_b32 s42, s51, 15")
    make_srd(A, 16, 32, "s42", add="s48")
    A(f"s_mul_i32 s48, s6, {43*4096}")
    A(f"s_add_u32 s48, s48, {W2F}")
    make_srd(A, 20, 32, 43*4096, add="s48")
    A(f"s_mul_i32 s48, s5, {43*4096}")
    A(f"s_add_u32 s48, s48, {HX}")
    make_srd(A, 28, 32, 43*4096, add="s48")
    A("s_lshl_b32 s42, s49, 12")
    A("s_add_u32 s48, s48, s42")
    A("s_lshl_b32 s42, s51, 12")
    make_srd(A, 24, 32, "s42", add="s48")
    A(f"v_add_u32 v{V_WL}, {WL}, v2")
    A(f"v_lshlrev_b32 v{V_L8}, 3, v1")

def setup_kv(A):
    T0, T1 = S[1], S[1]+1
    A(f"s_mul_i32 s46, s7, {KV2-KV1}")
    A(f"s_add_u32 s46, s46, {KV1}")
    A(f"s_mul_i32 s47, s3, {64*VBLK}")
    A("s_add_u32 s47, s47, s46")
    A(f"s_add_u32 s47, s47, {VOFF}")
    A("s_lshl_b32 s48, s3, 14")
    A("s_add_u32 s46, s46, s48")
    A(f"v_and_b32 v{T0}, 31, v1")
    A(f"v_lshrrev_b32 v{T1}, 5, v1")
    A(f"v_mul_u32_u24 v{V_V}, {VBLK}, v{T1}")
    A(f"v_lshl_add_u32 v{V_V}, v{T0}, 4, v{V_V}")
    A(f"v_cmp_lt_u32 vcc, 16, v{T0}")
    A(f"v_mov_b32 v{T1}, 0x7f000000")
    A(f"v_lshlrev_b32 v{V_T}, 7, v1")
    A("s_lshl_b32 s48, s3, 13")
    A(f"v_cndmask_b32 v{V_V}, v{V_V}, v{T1}, vcc")
    A("s_lshl_b32 s42, s7, 15")
    A("s_add_u32 s48, s48, s42")
    A(f"s_add_u32 s48, s48, {KVF}")

def setup_layer(A):
    T0, T1 = S[1], S[1]+1
    A(f"v_mov_b32 v{T0}, {MISC}")
    A(f"ds_write_b32 v{T0}, v{V_Z} offset:{FLAG}")
    A(f"v_mov_b32 v{V_IPV}, 0xdddddddd")
    A("s_lshl_b32 s48, s3, 14")
    A(f"v_add_u32 v{V_FL}, s48, v2")
    A("s_lshl_b32 s48, s3, 10")
    A(f"s_add_u32 s48, s48, {LB}")
    A(f"v_lshlrev_b32 v{V_FL2}, 2, v1")
    A(f"v_add_u32 v{V_FL2}, s48, v{V_FL2}")
    A("s_lshr_b32 s40, s3, 1")
    A("s_lshl_b32 s42, s40, 11")
    A("s_lshl_b32 s40, s40, 7")
    A("s_and_b32 s48, s3, 1")
    A("s_lshl_b32 s43, s48, 8")
    A("s_add_u32 s42, s42, s43")
    A("s_lshl_b32 s48, s48, 6")
    A("s_add_u32 s40, s40, s48")
    A(f"s_add_u32 s40, s40, {LB}")
    A(f"v_lshrrev_b32 v{T1}, 4, v1")
    A(f"v_lshlrev_b32 v{V_NRD}, 12, v{T1}")
    A(f"v_and_b32 v{T1}, 15, v1")
    A(f"v_lshl_add_u32 v{V_NRD}, v{T1}, 4, v{V_NRD}")
    A(f"v_add_u32 v{V_NRD}, s42, v{V_NRD}")
    A("s_lshl_b32 s53, s7, 15")
    A("s_lshl_b32 s48, s5, 8")
    A("s_add_u32 s53, s53, s48")
    A(f"s_add_u32 s53, s53, {FLG}")
    A("s_lshl_b32 s57, s3, 6")
    A("s_add_u32 s57, s57, s53")
    A("s_lshl_b32 s48, s6, 3")
    A("s_add_u32 s70, s57, s48")
    A("s_lshl_b32 s59, s6, 2")
    A("s_add_u32 s59, s59, s3")
    A("s_lshl_b32 s59, s59, 3")
    A("s_add_u32 s59, s59, s53")

def gen_kernel(A, name):
    kernel_begin(A, name)
    lend, ltop = A.label("end"), A.label("top")
    A("s_cmp_ge_u32 s2, 256")
    A(f"s_cbranch_scc1 {lend}")
    stamp_init(A)
    A("s_load_dwordx16 s[16:31], s[0:1], 0")
    A("s_load_dwordx2 s[32:33], s[0:1], 80")
    A("s_load_dwordx2 s[34:35], s[0:1], 64")
    A("s_load_dwordx2 s[66:67], s[0:1], 72")
    A("s_memrealtime s[64:65]")
    A("v_lshrrev_b32 v1, 6, v0")
    A("s_and_b32 s4, s2, 7")
    A("v_readfirstlane_b32 s3, v1")
    A("s_lshl_b32 s4, s4, 5")
    A("s_lshr_b32 s5, s2, 3")
    A("s_add_u32 s4, s4, s5")
    A("s_lshr_b32 s5, s4, 3")
    A("s_and_b32 s6, s4, 7")
    A("s_mov_b32 s7, 0")
    A("s_mov_b32 s56, 1")
    A("v_and_b32 v1, 63, v0")
    A("v_lshlrev_b32 v2, 4, v1")
    A(f"v_mov_b32 v{V_Z}, 0")
    A(f"v_mov_b32 v{V_Z+1}, 0")
    gen_front(A, name)
    setup_once(A)
    A(f"{ltop}:")
    stamp(A, "top")
    vm = Cnt(A, "vmcnt", 63)
    lg = Cnt(A, "lgkmcnt", 15)
    setup_kv(A)
    poll(A, V_T, False, sleep=4)
    stamp(A, "kvok")
    st = {}
    for s in range(4):
        kv_loads(A, vm, s, st)
    setup_layer(A)
    A("s_waitcnt lgkmcnt(0)")
    A("s_barrier")
    q_reads(A)
    NW2 = gen_attention(A, vm, lg, st)
    lslow, lback = A.label("slow"), A.label("back")
    A("s_waitcnt lgkmcnt(0)")
    A("s_barrier")
    A(f"ds_read_b32 v{V_T}, v{V_MISC} offset:{FLAG}")
    A("s_waitcnt lgkmcnt(0)")
    A(f"v_readfirstlane_b32 s48, v{V_T}")
    A("s_cmp_lg_u32 s48, 0")
    A(f"s_cbranch_scc1 {lslow}")
    A(f"{lback}:")
    CS1, ONES = 16, 28
    for r in range(4):
        A(f"v_mov_b32 v{ONES+r}, 0x3f803f80")
    unpack8(A, ACC16, XT)
    unpack8(A, ACC16+8, XT+4)
    def cs1(lo, hi):
        for f in range(lo, hi):
            mfma16(A, CS1+4*(f % 3), R(W1R[f], 4), vr(ONES, 4), f < 3)
    cs1(0, 6)
    publish(A, 0, 70)
    vm.mark_all_done()
    stamp(A, "pub1")
    for n in range(8):
        aread(A, lg, n, "ao")
    cs1(6, 24)
    wait_group(A, 0)
    stamp(A, "w1")
    def mk_bload(regs, src):
        def bload(ks):
            if ks % 4 == 0:
                A(f"s_add_u32 s48, s39, {src + ks*1024}")
            A(f"buffer_load_dwordx4 {R(regs[ks],4)}, v2, s[8:11], s48 offen offset:{(ks % 4)*1024} sc1"); vm.issue(("b", ks))
        return bload
    U0 = [0, 6, 11, 17, 22, 28, 33, 38]
    A("s_lshl_b32 s42, s3, 10")
    def bl(ks):
        A(f"s_add_u32 s48, s42, {(U0[ks >> 1] + (ks & 1))*4096}")
        A(f"buffer_load_dwordx4 {R(BO[ks],4)}, v2, s[28:31], s48 offen sc1"); vm.issue(("b", ks))
    for ks in range(8):
        bl(ks)
        if ks >= 2:
            cs1(24 + 2*(ks-2), 24 + 2*(ks-1))
    gemm64_core(A, vm, lg, lambda ks: R(BO[ks], 4), ACC16, None, True, tag="ao", pre=False, init=False, bload=bl)
    stamp(A, "oproj")
    VX = [V_NRD, V_IPV, V_K, V_V]
    VH = 104
    for t in range(4):
        A(f"s_add_u32 s42, s3, {t}")
        A("s_and_b32 s42, s42, 3")
        A("s_lshl_b32 s48, s42, 14")
        A(f"v_add_u32 v{VX[t]}, s48, v2")
    for i in range(8):
        A(f"v_cvt_pk_bf16_f32 v{XT+i}, v{ACC16+2*i}, v{ACC16+2*i+1}")
    A(f"s_add_u32 s48, s44, {XF}")
    for e in range(2):
        A(f"buffer_store_dwordx4 {vr(XT+4*e,4)}, v2, s[8:11], s48 offen offset:{e*1024}")
    stats_store(A, ACC16, 32, STF)
    publish(A, 1, 70)
    vm.mark_all_done()
    stamp(A, "pub2")
    cs1(36, 48)
    ACC = [32, 44]
    BF, NBF = 56, 6
    T4 = 80
    HP = 92
    STT = 80
    SPR = [108, 110, 28, 30]
    A("s_lshl_b32 s60, s3, 12")
    A("s_lshr_b32 s61, s3, 1")
    A("s_lshl_b32 s61, s61, 12")
    A("s_and_b32 s42, s3, 1")
    A("s_lshl_b32 s42, s42, 3")
    A("s_add_u32 s61, s61, s42")
    A(f"s_add_u32 s61, s61, {4*4096}")
    V_ST = V_FL2
    A(f"v_and_b32 v{V_ST}, 15, v1")
    A(f"v_lshlrev_b32 v{V_ST}, 3, v{V_ST}")
    A(f"v_add_u32 v{V_ST}, {MISC + STL}, v{V_ST}")
    for t in range(4):
        A(f"s_add_u32 s42, s3, {t}")
        A("s_and_b32 s42, s42, 3")
        A("s_lshl_b32 s42, s42, 10")
        A(f"v_add_u32 v{VH+t}, s42, v2")
    A("s_lshl_b32 s42, s3, 14")
    stamp(A, "cs1")
    wait_group(A, 1)
    stamp(A, "w2")
    def xdma(k):
        if k % 4 == 0:
            A(f"s_add_u32 m0, s42, {XL + k*1024}")
            rot_group(A, k >> 2, 40)
            A("s_add_u32 s40, s40, s39")
            A(f"s_add_u32 s40, s40, {XF}")
        A(f"buffer_load_dwordx4 v2, s[8:11], s40 offen offset:{(k % 4)*1024} sc1 lds"); vm.issue(("xl", k))
    XAH = 8
    for k in range(XAH):
        xdma(k)
        if k == 5:
            stats_load(A, vm, STT, STF)
    def silu_ops(acc, hp, sp):
        ops = []
        for k in range(12):
            ops.append(f"v_fmac_f32 v{acc+k}, v{sp}, v{CS1+k}")
        for k in range(12):
            ops.append(f"v_mul_f32 v{T4+k}, v{sp+1}, v{acc+k}")
        for k in range(12):
            ops.append(f"v_exp_f32 v{T4+k}, v{T4+k}")
        for k in range(12):
            ops.append(f"v_add_f32 v{T4+k}, 1.0, v{T4+k}")
        for k in range(12):
            ops.append(f"v_rcp_f32 v{T4+k}, v{T4+k}")
        for k in range(12):
            ops.append(f"v_mul_f32 v{T4+k}, v{acc+k}, v{T4+k}")
        for k in range(6):
            ops.append(f"v_cvt_pk_bf16_f32 v{hp+k}, v{T4+2*k}, v{T4+2*k+1}")
        return ops
    def h_store(p, k):
        hp = HP + 6*(p & 1)
        if k == 0:
            A(f"buffer_store_dwordx4 {vr(hp,4)}, v{VH+p}, s[24:27], s60 offen"); vm.issue(("st",))
        else:
            A(f"buffer_store_dwordx2 {vr(hp+4,2)}, v{VH+p}, s[24:27], s61 offen"); vm.issue(("st",))
    def wq_dma(k):
        wl_dma(A, vm, k, 36, 12)
    def w2_late(n):
        A(f"s_add_u32 s50, s55, {(n & ~3)*1024}")
        A(f"buffer_load_dwordx4 {R(W2R[n],4)}, v2, s[20:23], s50 offen offset:{(n % 4)*1024} sc1"); vm.issue(("w2", n))
    later = {}
    for i, n in enumerate(range(NW2, 44)):
        later[16 + 2*i] = lambda n=n: w2_late(n)
    for k in range(16):
        g = 20 + 2*k + (2 if k >= 6 else 0) + (2 if k >= 13 else 0)
        later[g] = lambda k=k: wq_dma(k)
    def bread(g):
        p, ks = g >> 4, g & 15
        if p == 0:
            vm.need(("xl", ks))
        A(f"ds_read_b128 {vr(BF+4*(g % NBF),4)}, v{VX[p]} offset:{XL + ks*1024}"); lg.issue(("b", g))
    PRE = NBF - 1
    PRE0 = 2
    for g in range(PRE0):
        bread(g)
    nread = PRE0
    pend = ["WST"] + stats_ops(STT) + [
        f"v_mov_b32 v{V_RS}, v{STT+1}",
        f"v_mov_b32 v{SPR[0]}, v{STT}",
        f"v_mul_f32 v{SPR[0]+1}, {f32bits(-1.4426950408889634):#x}, v{STT+1}",
        f"v_lshrrev_b32 v{STT+2}, 10, v{VH}",
        f"v_lshl_add_u32 v{STT+2}, v{STT+2}, 7, v{V_ST}",
        "DSW"]
    for t in range(1, 4):
        pend += [f"v_lshrrev_b32 v{STT+2+t}, 10, v{VH+t}", f"v_lshl_add_u32 v{STT+2+t}, v{STT+2+t}, 7, v{V_ST}"]
    cost = lambda op: 8 if ("v_exp" in op or "v_rcp" in op or "v_rsq" in op) else 4
    lg.need(("b", 0))
    for g in range(64):
        p, ks = g >> 4, g & 15
        if ks == 0:
            stamp(A, f"pass{p}")
            assert not pend or p == 0
            if p > 0:
                pend = silu_ops(ACC[(p-1) & 1], HP + 6*((p-1) & 1), SPR[p-1])
        if g == 16 - PRE0:
            assert not pend and nread == 16
            lg.need(("stw",))
            A("s_barrier")
            for t in range(1, 4):
                A(f"ds_read_b64 {vr(SPR[t],2)}, v{STT+2+t}"); lg.issue(("sp",))
        for mt in range(3):
            mfma16(A, ACC[p & 1]+4*mt, R(W1R[ks*3+mt], 4), vr(BF+4*(g % NBF), 4), ks == 0)
            lim = g + (PRE0 if g < 16 - PRE0 else PRE)
            if (mt == 0 or (mt == 1 and g >= 16 - PRE0 and g not in later)) and nread <= lim and nread < 64:
                bread(nread); nread += 1
            if mt == 1:
                if g + XAH < 16:
                    xdma(g + XAH)
                if p >= 2 and ks < 2:
                    assert g not in later
                    h_store(p-2, ks)
                elif g in later:
                    later.pop(g)()
            if mt == 2 and g < 63:
                lg.need(("b", g+1))
            slot = ks*3 + mt
            if pend and ((p == 0 and ks >= 5) or (p > 0 and slot >= 4)):
                left = 48 - slot
                budget = max(8, -(-sum(map(cost, pend)) // left)) if p > 0 else 8
                while pend and budget > 0:
                    op = pend.pop(0)
                    if op == "DSW":
                        A(f"ds_write_b64 v{STT+2}, {vr(SPR[0],2)}"); lg.issue(("stw",))
                    elif op == "WST":
                        vm.need(("stat",))
                        continue
                    else:
                        A(op)
                    budget -= cost(op)
    assert not later and not pend
    stamp(A, "pass4")
    h_store(2, 0); h_store(2, 1)
    A("s_nop 5")
    for op in silu_ops(ACC[1], HP+6, SPR[3]):
        A(op)
    h_store(3, 0); h_store(3, 1)
    stamp(A, "silu")
    publish(A, 2, 59)
    vm.mark_all_done()
    A("s_barrier")
    stamp(A, "pub3")
    HR = [('v', 120+4*k) for k in range(34)] + [('a', 192+4*k) for k in range(10)]
    A(f"s_mul_i32 s42, s3, {12*1024}")
    A(f"v_add_u32 v{VX[0]}, s42, v2")
    for t in range(1, 4):
        A(f"s_add_u32 s42, s3, {4-t}")
        A("s_and_b32 s42, s42, 3")
        A(f"s_mul_i32 s42, s42, {12*1024}")
        A(f"v_add_u32 v{VX[t]}, s42, v2")
    XR = 16
    unpack8(A, XR, XT)
    unpack8(A, XR+8, XT+4)
    wait_group(A, 2)
    stamp(A, "w3")
    TORD = [1, 2, 3, 0]
    def hload(n):
        t, ks = TORD[n // 11], n % 11
        A(f"s_add_u32 s51, s55, {ks*4096}")
        A(f"buffer_load_dwordx4 {R(HR[n],4)}, v{VH+t}, s[28:31], s51 offen sc1"); vm.issue(("h", n))
    AHEAD = 8
    for n in range(AHEAD):
        hload(n)
    AC2 = 32
    acc2 = lambda t, c: AC2 + (t*4 + c)*4
    pend = []
    for n in range(44):
        t, ks = TORD[n // 11], n % 11
        if n == 0:
            vm.need(("h", n))
        if t == 0 and ks == 4:
            lg.all()
            A("s_barrier")
            stamp(A, "rbar")
        if t == 0 and ks == 7:
            pend = [("W", 8)] + [f"v_add_f32 v{AC2+16+i}, v{AC2+16+i}, v{AC2+32+i}" for i in range(16)] + [("W", 12)] + \
                   [f"v_add_f32 v{AC2+16+i}, v{AC2+16+i}, v{AC2+48+i}" for i in range(16)]
        for c in range(4):
            mfma16(A, acc2(t, c), R(W2R[ks*4+c], 4), R(HR[n], 4), ks == 0)
            if c == 0 and n + AHEAD < 44:
                hload(n+AHEAD)
            if c == 3 and n < 43:
                vm.need(("h", n+1))
            if n >= 11 and ks == 2:
                pt = TORD[n // 11 - 1]
                A(f"ds_write_b128 v{VX[0]}, {vr(acc2(pt,c),4)} offset:{RB + ((pt-1)*4 + c)*1024}"); lg.issue(("rw",))
            if t == 0 and 4 <= ks <= 6:
                tt = ks - 3
                A(f"ds_read_b128 {vr(acc2(tt,c),4)}, v{VX[tt]} offset:{RB + ((tt-1)*4 + c)*1024}"); lg.issue(("rr", (tt-1)*4 + c + 1))
            k = 0
            while pend and k < 2:
                op = pend.pop(0)
                if isinstance(op, tuple):
                    lg.need(("rr", op[1]))
                else:
                    A(op); k += 1
    assert not pend
    stamp(A, "f2done")
    for i in range(16):
        A(f"v_fmac_f32 v{XR+i}, v{V_RS}, v{AC2+16+i}")
    for i in range(0, 16, 2):
        A(f"v_pk_fma_f32 {vr(XR+i,2)}, {vr(AC2+i,2)}, {vr(V_RS,2)}, {vr(XR+i,2)} op_sel_hi:[1,0,1]")
    for i in range(8):
        A(f"v_cvt_pk_bf16_f32 v{XT+i}, v{XR+2*i}, v{XR+2*i+1}")
    llast = A.label("last")
    A("s_cmp_eq_u32 s7, 1")
    A(f"s_cbranch_scc1 {llast}")
    A(f"s_add_u32 s48, s44, {XF}")
    for e in range(2):
        A(f"buffer_store_dwordx4 {vr(XT+4*e,4)}, v2, s[8:11], s48 offen offset:{e*1024}")
    stats_store(A, XR, 32, STF)
    publish(A, 3, 70)
    stamp(A, "pub4")
    WKV, CSQ, CSK, ONES, AKV, STT, QP = 120, 184, 200, 204, 208, 216, 232
    B2 = [('v', 16+4*k) for k in range(8)] + [('v', 52+4*k) for k in range(3)] + [('a', 192+4*k) for k in range(5)]
    lkv, lq = A.label("kv2"), A.label("q2")
    A(f"v_lshrrev_b32 v{V_T}, 4, v1")
    A(f"v_lshlrev_b32 v{V_T}, 6, v{V_T}")
    A(f"v_add_u32 v{V_T}, {MISC + CSQL}, v{V_T}")
    for k in range(4):
        A(f"ds_read_b128 {vr(CSQ+4*k,4)}, v{V_T} offset:{16*k}")
    kv_kind(A)
    A("s_cmp_lg_u32 s60, 0")
    A(f"s_cbranch_scc1 {lkv}")
    vm = Cnt(A, "vmcnt", 63); lg = Cnt(A, "lgkmcnt", 15)
    for n in range(8):
        aread(A, lg, n, "aq")
    wait_group(A, 3)
    stamp(A, "w4")
    bl = mk_bload(B2, XF)
    for ks in range(8):
        bl(ks)
    gemm64_core(A, vm, lg, lambda ks: R(B2[ks], 4), ACC16, None, True, tag="aq", pre=False,
                bload=lambda ks: (bl(ks), stats_load(A, vm, STT, STF) if ks == 15 else None))
    vm.need(("stat",))
    for op in stats_ops(STT):
        A(op)
    A(f"s_branch {lq}")
    A(f"{lkv}:")
    vm = Cnt(A, "vmcnt", 63); lg = Cnt(A, "lgkmcnt", 15)
    A("s_setprio 3")
    for r in range(4):
        A(f"v_mov_b32 v{ONES+r}, 0x3f803f80")
    A(f"v_add_u32 v{V_T}, {MISC + CSKL}, v2")
    A(f"ds_read_b128 {vr(CSK,4)}, v{V_T}")
    kv_tr_reads(A, WKV, V_T)
    wait_group(A, 3)
    stamp(A, "w4")
    stats_load(A, vm, STT, STF)
    bl = mk_bload(B2, XF)
    for ks in range(16):
        bl(ks)
    vm.need(("stat",))
    for op in stats_ops(STT):
        A(op)
    A("s_waitcnt vmcnt(0) lgkmcnt(0)")
    kv_mfmas(A, AKV, lambda ks: R(B2[ks], 4), WKV)
    A("s_nop 4")
    kv_epilogue(A, AKV, CSK, STT, ONES, MISC + STV)
    done = []
    def hook(ks):
        if ks == 14:
            kv_publish(A, 1)
            stamp(A, "kvpub")
    gemm64_core(A, vm, lg, lambda ks: R(B2[ks], 4), ACC16, None, False, tag="aq", pre=True, bload=hook)
    A("s_setprio 0")
    A(f"{lq}:")
    stamp(A, "qgemm")
    A(f"v_lshrrev_b32 v{V_T}, 4, v1")
    A(f"v_lshlrev_b32 v{V_T}, 11, v{V_T}")
    A(f"v_and_b32 v{V_K}, 15, v1")
    A(f"v_lshl_add_u32 v{V_T}, v{V_K}, 4, v{V_T}")
    A("s_lshr_b32 s42, s3, 1")
    A("s_lshl_b32 s48, s42, 10")
    A("s_and_b32 s42, s3, 1")
    A("s_lshl_b32 s42, s42, 8")
    A("s_add_u32 s48, s48, s42")
    A(f"s_add_u32 s48, s48, {QL}")
    A(f"v_add_u32 v{V_K}, s48, v{V_T}")
    A(f"v_mov_b32 v{STT+2}, v{STT+1}")
    for i in range(0, 16, 2):
        A(f"v_pk_fma_f32 {vr(ACC16+i,2)}, {vr(CSQ+i,2)}, {vr(STT,2)}, {vr(ACC16+i,2)} op_sel_hi:[1,0,1]")
    for i in range(0, 16, 2):
        A(f"v_pk_mul_f32 {vr(ACC16+i,2)}, {vr(ACC16+i,2)}, {vr(STT+2,2)} op_sel_hi:[1,0]")
    for i in range(8):
        A(f"v_cvt_pk_bf16_f32 v{QP+i}, v{ACC16+2*i}, v{ACC16+2*i+1}")
    for hh in range(2):
        A(f"ds_write_b128 v{V_K}, {vr(QP+4*hh,4)} offset:{hh*512}")
    A("s_mov_b32 s7, 1")
    A("s_mov_b32 s14, 0")
    stamp_flush(A, 0)
    A(f"s_branch {ltop}")
    A(f"{llast}:")
    make_srd(A, 12, 34, 2048*1024)
    A(f"v_and_b32 v{V_K}, 15, v1")
    A(f"v_lshlrev_b32 v{V_K}, 10, v{V_K}")
    A(f"v_lshrrev_b32 v{V_T}, 4, v1")
    A(f"v_lshl_add_u32 v{V_K}, v{V_T}, 5, v{V_K}")
    A("s_lshl_b32 s48, s6, 7")
    A("s_add_u32 s48, s48, s39")
    for h in range(2):
        A(f"buffer_store_dwordx4 {vr(XT+4*h,4)}, v{V_K}, s[12:15], s48 offen offset:{16*h}")
    stamp(A, "fin")
    if STAMPS:
        A("s_waitcnt vmcnt(0)")
    stamp_flush(A, 1)
    A(f"{lend}:")
    A("s_endpgm")
    gen_slow(A, lslow, lback, NW2)
```

```python
import sys
from common import *
import mega

def build():
    ref = open(f"cdna_kernels/{NAME}.s.ref").read().split("\n")
    head = [l for l in ref if l.startswith(";") and "@launch" not in l]
    kn = NAME + "_kernel"
    out = "\n".join(head) + "\n"
    out += f"; @launch grid=(256,1,1) block=(256,1,1) lds={mega.LDS_BYTES}\n"
    A = Asm()
    A('.amdgcn_target "amdgcn-amd-amdhsa--gfx950"')
    A(".text")
    mega.gen_kernel(A, kn)
    A("L_code_end:")
    out += A.text()
    out += '.section .rodata,"a"\n'
    out += ".p2align 6\n" + descriptor(kn, 512, 256, 102 if STAMPS else 72)
    return out

if __name__ == "__main__":
    dst = sys.argv[1] if len(sys.argv) > 1 else f"cdna_kernels/{NAME}.s"
    open(dst, "w").write(build())
    print("wrote", dst)
```
